```python
import torch

def _softmax(x, axis=-1):
    return torch.softmax(x, dim=axis)
def _gelu(x):
    return torch.nn.functional.gelu(x, approximate="tanh")
def _silu(x):
    return torch.nn.functional.silu(x)
def _sigmoid(x):
    return torch.sigmoid(x)
def _layernorm(x, axis=-1, eps=1e-5):
    m = x.mean(dim=axis, keepdim=True)
    v = x.var(dim=axis, keepdim=True, unbiased=False)
    return (x - m) / torch.sqrt(v + eps)
def _scatter_add(tgt, idx, src, axis=0):
    return tgt.clone().index_add_(axis, idx, src)
def _segment_sum(src, seg, n):
    out = torch.zeros((n,) + src.shape[1:], dtype=src.dtype)
    return out.index_add_(0, seg, src)
def _pad(x, pw):
    flat = tuple(v for pair in reversed(pw) for v in pair)
    return torch.nn.functional.pad(x, flat)

kernel_name = 'concat_heads__ssm_conv_h3__spectral_fnet__prompt'

def setup_inputs():

    _w = (lambda a: (lambda t: t.to(torch.bfloat16) if t.is_floating_point() else t)(torch.as_tensor(a)))
    def _A_setup():
        B, S, D = 1, 2048, 512
        ks = 4
        return {
            "q": _w((lambda *s: torch.randn(*s, dtype=torch.bfloat16) * 0.05)(B, S, D)),
            "k": _w((lambda *s: torch.randn(*s, dtype=torch.bfloat16) * 3.2)(B, S, D)),
            "v": _w((lambda *s: torch.randn(*s, dtype=torch.bfloat16) * 3.2)(B, S, D)),
            "shift_k": _w((lambda *s: torch.randn(*s, dtype=torch.bfloat16) * 3.2)(D, ks) * 0.5),
            "ssm_k": _w((lambda *s: torch.randn(*s, dtype=torch.bfloat16) * 3.2)(D, S) * (1.0 / S ** 0.5)),
            "ssm_D": _w((lambda *s: torch.randn(*s, dtype=torch.bfloat16) * 3.2)(D)),
        }
    _A_in = _A_setup()

    def _B_setup():
        B, S, D = 1, 2048, 512
        ns = torch.arange(S)[:, None] * torch.arange(S)[None, :]
        nd = torch.arange(D)[:, None] * torch.arange(D)[None, :]
        Ws_re = torch.cos(-2.0 * torch.pi * ns / S).to(float)
        Ws_im = torch.sin(-2.0 * torch.pi * ns / S).to(float)
        Wd_re = torch.cos(-2.0 * torch.pi * nd / D).to(float)
        Wd_im = torch.sin(-2.0 * torch.pi * nd / D).to(float)
        return {
            "x": _w((lambda *s: torch.randn(*s, dtype=torch.bfloat16) * 0.05)(B, S, D)),
            "dft_seq_re": _w(Ws_re),
            "dft_seq_im": _w(Ws_im),
            "dft_hid_re": _w(Wd_re),
            "dft_hid_im": _w(Wd_im),
        }
    _B_in = _B_setup()

    return {
        "A_q": _A_in["q"],
        "A_k": _A_in["k"],
        "A_v": _A_in["v"],
        "A_shift_k": _A_in["shift_k"],
        "A_ssm_k": _A_in["ssm_k"],
        "A_ssm_D": _A_in["ssm_D"],
        "B_x": _B_in["x"],
        "B_dft_seq_re": _B_in["dft_seq_re"],
        "B_dft_seq_im": _B_in["dft_seq_im"],
        "B_dft_hid_re": _B_in["dft_hid_re"],
        "B_dft_hid_im": _B_in["dft_hid_im"],
    }

def reference(A_q, A_k, A_v, A_shift_k, A_ssm_k, A_ssm_D, B_x, B_dft_seq_re, B_dft_seq_im, B_dft_hid_re, B_dft_hid_im):
    def _A_ref(q, k, v, shift_k, ssm_k, ssm_D):
        B, S, D = q.shape
        ks = shift_k.shape[-1]
        k_pad = _pad(k, ((0, 0), (ks - 1, 0), (0, 0)))
        k_shift = torch.zeros_like(k)
        for t in range(ks):
            k_shift = k_shift + k_pad[:, t:t + S, :] * shift_k[:, ks - 1 - t][None, None, :]
        kv = k_shift * v
        L = 2 * S
        kv_pad = _pad(kv, ((0, 0), (0, S), (0, 0)))
        kf_pad = _pad(ssm_k, ((0, 0), (0, S)))
        kv_f = (lambda x, axes=(-2,-1): torch.fft.rfft2(x.float(), dim=axes))(kv_pad[:, None, :, :], axes=(1, 2))
        kf_f = (lambda x, axes=(-2,-1): torch.fft.rfft2(x.float(), dim=axes))(kf_pad[:, None, :], axes=(1, 2))
        kf_f = (lambda x, *d: x.permute(*d))(kf_f, 1, 2, 0)
        y_f = kv_f * kf_f[None, :, :, :]
        y = (lambda x, s, axes=(-2,-1): torch.fft.irfft2(x, s=s, dim=axes).to(torch.bfloat16))(y_f, (1, L), axes=(1, 2))[:, 0, :S, :]
        y = y + kv * ssm_D[None, None, :]
        return q * y

    def _B_ref(x, dft_seq_re, dft_seq_im, dft_hid_re, dft_hid_im):
        a = torch.einsum("bsd,ed->bse", x, dft_hid_re)
        b = torch.einsum("bsd,ed->bse", x, dft_hid_im)
        y = torch.einsum("ts,bse->bte", dft_seq_re, a) - torch.einsum("ts,bse->bte", dft_seq_im, b)
        return y

    a = _A_ref(A_q, A_k, A_v, A_shift_k, A_ssm_k, A_ssm_D)
    b = _B_ref(B_x, B_dft_seq_re, B_dft_seq_im, B_dft_hid_re, B_dft_hid_im)
    return torch.concatenate([a, b], axis=-1)
```

```python
import re
_RNG = re.compile(r"\b([vsa])\[(\d+):(\d+)\]|\b([vsa])(\d+)\b|\b(vcc|exec|m0)\b")
TRANS = ("v_exp_", "v_log_", "v_rcp_", "v_rsq_", "v_sqrt_", "v_sin_", "v_cos_")

def regs(tok):
    out = set()
    for m in _RNG.finditer(tok):
        if m.group(1): out |= {(m.group(1), i) for i in range(int(m.group(2)), int(m.group(3)) + 1)}
        elif m.group(4): out.add((m.group(4), int(m.group(5))))
        else: out.add((m.group(6), 0))
    return out

class I:
    def __init__(self, text):
        self.text = text
        t = text.split(";")[0].strip()
        self.label = t.endswith(":")
        self.directive = t.startswith(".") and not self.label
        self.op = t.split()[0] if t else ""
        rest = t[len(self.op):]
        ops = [o.strip() for o in re.split(r",(?![^\[]*\])", rest)] if rest.strip() else []
        self.ops = ops
        op = self.op
        self.kind = "other"; self.d = set(); self.u = set(); self.passes = 0; self.srcc = set(); self.ab = set()
        self.states = 1
        if self.label or self.directive or not op:
            self.kind = "none"; self.states = 0; return
        if op == "s_nop": self.states = int(ops[0]) + 1; return
        R = [regs(o) for o in ops]
        allu = lambda xs: set().union(*xs) if xs else set()
        if op.startswith("v_mfma"):
            self.kind = "mfma"; self.passes = 8 if "32x32" in op else 4
            self.d = R[0]; self.ab = R[1] | R[2]; self.srcc = R[3]; self.u = self.ab | self.srcc
        elif op.startswith("v_"):
            self.kind = "valu"
            self.d = R[0]; self.u = allu(R[1:])
            if op.startswith(("v_swap", "v_permlane16_swap", "v_permlane32_swap")):
                self.d = R[0] | R[1]; self.u = R[0] | R[1]
            if op.startswith(("v_fmac", "v_dot2c", "v_writelane")): self.u |= R[0]
            if op.startswith(("v_add_co", "v_sub_co", "v_addc_co")): self.d = R[0] | R[1]; self.u = allu(R[2:])
        elif op.startswith(("buffer_", "global_")):
            lds = " lds" in t or "_lds_" in op
            if "store" in op or "atomic" in op:
                self.kind = "vst"; self.u = allu(R)
                self.data = R[0] if op.startswith("buffer_") else R[1]
                self.wide = "x3" in op or "x4" in op
            elif lds:
                self.kind = "vdma"; self.u = allu(R) | {("m0", 0)}
            else:
                self.kind = "vld"; self.d = R[0]; self.u = allu(R[1:])
        elif op.startswith("ds_"):
            if "read" in op or "permute" in op or "swizzle" in op:
                self.kind = "dsr"; self.d = R[0]; self.u = allu(R[1:])
            else:
                self.kind = "dsw"; self.u = allu(R)
        elif op.startswith("s_"):
            self.kind = "salu"
            if op.startswith(("s_cmp", "s_cbranch", "s_branch", "s_waitcnt", "s_barrier", "s_setprio", "s_sleep", "s_endpgm", "s_bitcmp")):
                self.u = allu(R)
            else:
                self.d = R[0] if R else set(); self.u = allu(R[1:])

def V(s): return {x for x in s if x[0] in "va"}
def S(s): return {x for x in s if x[0] in ("s", "vcc")}

def need(p, c):
    n = 0
    mem = ("vst", "vld", "vdma", "dsr", "dsw")
    if p.kind == "valu":
        vd = V(p.d); sd = S(p.d)
        isdot = p.op.startswith("v_dot")
        if c.kind == "mfma" and vd & c.u: n = max(n, 3 if isdot else 2)
        if c.kind == "valu":
            if c.op.startswith("v_permlane") and vd & c.u: n = max(n, 2)
            if ("dpp" in c.text or "row_" in c.text or "quad_perm" in c.text) and vd & c.u: n = max(n, 2)
            if c.op.startswith(("v_readlane", "v_readfirstlane")) and vd & c.u: n = max(n, 1)
            if p.op.startswith(TRANS) and not c.op.startswith(TRANS) and vd & c.u: n = max(n, 1)
            if sd & c.u: n = max(n, 4 if c.op.startswith(("v_readlane", "v_writelane")) else 2)
            if "sdwa" in p.op and vd & (c.u | c.d): n = max(n, 1)
        if isdot and vd & (c.u | c.d):
            same_c = c.op == p.op and not (vd & (regs(c.ops[1]) | regs(c.ops[2])))
            if not same_c: n = max(n, 3)
        if p.op.startswith(TRANS) and c.kind in mem and vd & c.u: n = max(n, 1)
        if c.kind in ("vst", "vld", "vdma") and sd & c.u: n = max(n, 5)
    if p.kind == "mfma":
        big = p.passes == 8
        if c.kind == "mfma":
            if p.d & c.ab: n = max(n, 12 if big else 8)
            if p.d & c.srcc and not (p.d == c.srcc and p.passes == c.passes): n = max(n, 10 if big else 6)
            if p.d & c.d and not (p.d == c.srcc and p.passes == c.passes): n = max(n, 10 if big else 6)
        elif c.kind == "valu" or c.kind in mem:
            if p.d & (c.u | c.d): n = max(n, 12 if big else 8)
            if c.kind == "valu" and p.srcc & c.d: n = max(n, 7 if big else 3)
    if p.kind == "vst" and p.wide and V(p.data) & c.d: n = max(n, 2)
    if p.kind == "salu" and ("m0", 0) in p.d and c.kind == "vdma": n = max(n, 1)
    return n

class Asm:
    def __init__(self): self.ins = []
    def __call__(self, text):
        for line in text.split("\n"):
            if line.strip(): self.ins.append(I(line.strip()))
    def finish(self):
        out = []; nops = 0
        for c in self.ins:
            if c.kind != "none":
                dist = 0; pad = 0
                for p in reversed(out):
                    if dist >= 20: break
                    if p.kind == "none": continue
                    r = need(p, c)
                    if r > dist: pad = max(pad, r - dist)
                    dist += p.states
                if pad:
                    out.append(I("s_nop %d" % (pad - 1))); nops += pad
            out.append(c)
        self.nops = nops
        return "\n".join((i.text if (i.label or i.directive) else "    " + i.text) for i in out) + "\n"
```

```python
import sys, struct
from asmlib import Asm
NAME = "concat_heads__ssm_conv_h3__spectral_fnet__prompt"
STAMPS = "--stamps" in sys.argv
FORCE_SLOW = "--slow" in sys.argv

WS_U, WS_G, WS_F, WS_U2, WS_Y2, WS_ST, WS_SIZE = 0x0, 0x200000, 0x400000, 0x600000, 0x800000, 0xA00000, 0xC00000
F_1, F_2, F_HELLO, F_SLOW, F_NONCE, F_B = 0, 4096, 8192, 16384, 32768, 40960
NONCE_INC = 0x9E3779B0
E_CH, E_B0 = 16512, 128
U_B = 34048
T_B = 42240
R_B = 50560
LDS_BYTES = 66944
X_B, V_B = 0, 8192
SPIN_MAX = 1 << 18

def f2u(x): return "0x%08x" % struct.unpack("<I", struct.pack("<f", x))[0]
def vr(a, n=1): return "v%d" % a if n == 1 else "v[%d:%d]" % (a, a + n - 1)

a = Asm()
nstamp = [0]
def stamp():
    if STAMPS:
        i = nstamp[0]; nstamp[0] += 1
        a(f"s_memtime s[{64 + 2 * i}:{65 + 2 * i}]")
def stamps_out():
    if not STAMPS: return
    n = nstamp[0]
    a("s_waitcnt lgkmcnt(0)")
    a("v_mov_b32 v1, 0")
    a("v_writelane_b32 v1, s62, 0")
    for i in range(n):
        a(f"s_sub_u32 s60, s{64 + 2 * i}, s64")
        a(f"v_writelane_b32 v1, s60, {i + 1}")
    a(f"""
s_lshl_b32 s60, s2, 10
s_add_u32 s60, s60, {WS_ST}
v_lshlrev_b32 v2, 2, v0
buffer_store_dword v1, v2, s[28:31], s60 offen
""")

a(f"""
{NAME}_kernel:
s_cmp_ge_u32 s2, 512
s_cbranch_scc1 L_end
s_load_dwordx16 s[4:19], s[0:1], 0
s_load_dwordx2 s[20:21], s[0:1], 88
s_load_dwordx2 s[22:23], s[0:1], 104
""")
if STAMPS: a("s_memrealtime s[62:63]")
stamp()
a(f"""
s_getpc_b64 s[32:33]
s_and_b32 s34, s2, 7
s_bfe_u32 s35, s2, 0x50003
v_lshrrev_b32 v1, 6, v0
s_lshl_b32 s37, s35, 9
v_lshl_add_u32 v2, v1, 7, s37
v_readfirstlane_b32 s36, v1
global_load_dword v15, v2, s[32:33]
s_mov_b32 s27, 0x20000
s_mov_b32 s30, {WS_SIZE}
s_mov_b32 s31, 0x20000
v_and_b32 v14, 63, v0                    ; lane
s_cmp_ge_u32 s2, 256
s_cbranch_scc1 L_B
""")

K, VV, WT, H, DD, Q, KV, ACC, AF = 16, 36, 44, 60, 76, 80, 88, 96, 128
a(f"""
s_setprio 1
v_lshrrev_b32 v1, 3, v0                  ; tp
v_and_b32 v2, 7, v0                      ; q
s_lshl_b32 s37, s35, 16
s_lshl_b32 s38, s34, 7
s_add_u32 s37, s37, s38
v_lshlrev_b32 v3, 11, v1
v_lshl_add_u32 v3, v2, 4, v3
v_add_u32 v3, s37, v3
v_add_u32 v4, 0xfffff400, v3
v_add_u32 v5, 0xfffff800, v3
v_add_u32 v6, 0xfffffc00, v3
s_lshl_b32 s39, s34, 9
v_lshl_add_u32 v7, v2, 6, s39
s_mov_b32 s26, 0x200000
s_add_u32 s40, s38, {WS_F + F_NONCE}
s_waitcnt lgkmcnt(0)
s_mov_b32 s24, s6
s_mov_b32 s25, s7
s_load_dword s41, s[22:23], s40
buffer_load_dwordx4 {vr(K,4)}, v4, s[24:27], 0 offen
buffer_load_dwordx4 {vr(K+4,4)}, v5, s[24:27], 0 offen
buffer_load_dwordx4 {vr(K+8,4)}, v6, s[24:27], 0 offen
buffer_load_dwordx4 {vr(K+12,4)}, v3, s[24:27], 0 offen
buffer_load_dwordx4 {vr(K+16,4)}, v3, s[24:27], 0 offen offset:1024
global_load_dwordx4 {vr(WT,4)}, v7, s[10:11]
global_load_dwordx4 {vr(WT+4,4)}, v7, s[10:11] offset:16
global_load_dwordx4 {vr(WT+8,4)}, v7, s[10:11] offset:32
global_load_dwordx4 {vr(WT+12,4)}, v7, s[10:11] offset:48
global_load_dwordx4 {vr(VV,4)}, v3, s[8:9]
global_load_dwordx4 {vr(VV+4,4)}, v3, s[8:9] offset:1024
s_mov_b32 s28, s22
s_mov_b32 s29, s23
; --- h loads
s_lshl_b32 s42, s34, 18
s_lshl_b32 s43, s35, 13
s_add_u32 s42, s42, s43
v_lshrrev_b32 v4, 7, v0                  ; ch
v_and_b32 v5, 127, v0                    ; T'
v_lshlrev_b32 v6, 12, v4
v_lshl_add_u32 v6, v5, 3, v6
v_add_u32 v6, s42, v6
v_cmp_eq_u32 s[44:45], 0, v5
v_add_u32 v7, 8, v6
v_cndmask_b32 v7, v6, v7, s[44:45]
global_load_dwordx4 {vr(H,4)}, v7, s[12:13] offset:-8
global_load_dwordx4 {vr(H+4,4)}, v6, s[12:13] offset:1016
global_load_dwordx4 {vr(H+8,4)}, v6, s[12:13] offset:2040
global_load_dwordx4 {vr(H+12,4)}, v6, s[12:13] offset:3064
; --- make the own box and the flag lines resident in L2 (values are not used)
v_lshlrev_b32 v7, 5, v0
buffer_load_dword v15, v7, s[28:31], s42 offen sc1
s_add_u32 s46, s39, {WS_F}
v_lshrrev_b32 v7, 5, v14
v_lshlrev_b32 v7, 12, v7
s_lshl_b32 s47, s36, 7
v_add_u32 v7, s47, v7
buffer_load_dword v15, v7, s[28:31], s46 offen sc1
v_lshl_add_u32 v7, v2, 4, s38
global_load_dwordx4 {vr(DD,4)}, v7, s[14:15]
; --- table write address, zero pads
v_mul_u32_u24 v4, {E_CH}, v4
v_lshl_add_u32 v8, v5, 5, v4
v_and_b32 v5, 31, v0
v_lshl_add_u32 v4, v5, 2, v4
v_mov_b32 v6, 0
ds_write_b32 v4, v6
v_lshlrev_b32 v4, 2, v0
ds_write_b32 v4, v6 offset:{U_B - 1024}
; --- transposition image addresses
v_mul_u32_u24 v9, 1040, v2
v_lshl_add_u32 v10, v1, 2, v9
v_xor_b32 v4, 3, v1
v_lshl_add_u32 v9, v4, 2, v9
s_and_b32 s48, s35, 3
v_xor_b32 v4, s48, v14
v_and_b32 v5, 1, v4
v_lshlrev_b32 v5, 7, v5                  ; ch*128
v_and_b32 v4, 2, v4
v_lshl_add_u32 v5, v4, 3, v5             ; + parity*16
v_and_b32 v4, 12, v14
v_lshl_add_u32 v5, v4, 3, v5             ; + xl*32
v_lshrrev_b32 v4, 4, v14
v_lshl_add_u32 v5, v4, 8, v5             ; + (L>>4)*256
s_mul_i32 s48, s36, 2080
v_add_u32 v11, s48, v5                   ; v11 = image re-read address (z=1: +1040)
v_and_b32 v5, 15, v14
v_lshlrev_b32 v5, 4, v5
v_lshl_add_u32 v12, v4, 13, v5           ; v12 = (L>>4)*8192 + 16*(L&15)
s_lshl_b32 s48, s34, 18
s_lshl_b32 s49, s36, 16
s_add_u32 s48, s48, s49
s_lshl_b32 s49, s35, 8
s_add_u32 s48, s48, s49
s_add_u32 s49, s48, 32768
s_mov_b32 s50, 0x05040100
s_mov_b32 s51, 0x07060302
s_getreg_b32 s52, hwreg(HW_REG_XCC_ID, 0, 4)
""")
if FORCE_SLOW: a("s_and_b32 s52, s35, 1")
stamp()
P = ACC
a("s_waitcnt vmcnt(13)")
stamp()
for p in range(4):
    for e in range(8):
        a(f"v_perm_b32 v{P + 8 * p + e}, v{K + 4 * p + e // 2}, v{K + 4 * (p + 1) + e // 2}, s{50 + (e & 1)}")
a(f"""
s_waitcnt lgkmcnt(0)
s_add_u32 s41, s41, {NONCE_INC}
s_add_u32 s52, s52, s41
s_waitcnt vmcnt(9)
""")
KS = AF
for e in range(8):
    a(f"v_dot2_f32_bf16 v{KS + e}, v{P + 16 + e}, v{WT + 2 * e}, 0")
    a(f"v_dot2_f32_bf16 v{KS + 8 + e}, v{P + 24 + e}, v{WT + 2 * e}, 0")
for e in range(8):
    a(f"v_dot2_f32_bf16 v{KS + e}, v{P + e}, v{WT + 2 * e + 1}, v{KS + e}")
    a(f"v_dot2_f32_bf16 v{KS + 8 + e}, v{P + 8 + e}, v{WT + 2 * e + 1}, v{KS + 8 + e}")
a("s_waitcnt vmcnt(7)")
stamp()
VF = AF + 16
for row in range(2):
    for e in range(8):
        src = VV + 4 * row + e // 2
        a(f"v_and_b32 v{VF + 8 * row + e}, 0xffff0000, v{src}" if e & 1 else f"v_lshlrev_b32 v{VF + 8 * row + e}, 16, v{src}")
for e in range(8):
    a(f"v_mul_f32 v{KS + e}, v{KS + e}, v{VF + e}")
    a(f"v_mul_f32 v{KS + 8 + e}, v{KS + 8 + e}, v{VF + 8 + e}")
    a(f"v_cvt_pk_bf16_f32 v{KV + e}, v{KS + 8 + e}, v{KS + e}")
a(f"v_add_u32 v9, {T_B}, v9")
for e in range(0, 8, 2):
    a(f"ds_write2_b32 v9, v{KV + e}, v{KV + e + 1} offset0:{32 * e} offset1:{32 * e + 32}")
UB0 = VV
a(f"""
v_mov_b32 v13, s52
s_lshl_b32 s53, s35, 2
s_waitcnt lgkmcnt(0)
s_barrier
ds_read_b128 {vr(UB0,4)}, v11 offset:{T_B}
ds_read_b128 {vr(UB0+4,4)}, v11 offset:{T_B + 1040}
s_add_u32 s54, s53, s47
v_mov_b32 v4, s54
s_lshr_b32 s54, s35, 3
s_lshl_b32 s54, s54, 7
v_and_b32 v5, 31, v14
v_lshl_add_u32 v5, v5, 2, s54
s_waitcnt lgkmcnt(1)
buffer_store_dwordx4 {vr(UB0,4)}, v12, s[28:31], s48 offen
s_waitcnt lgkmcnt(0)
buffer_store_dwordx4 {vr(UB0+4,4)}, v12, s[28:31], s49 offen
""")
stamp()
a("s_waitcnt vmcnt(5)")
stamp()
T = K
a(f"""
v_cndmask_b32 v{H+3}, v{H+3}, v{H+1}, s[44:45]
v_cndmask_b32 v{H+2}, v{H+2}, v{H}, s[44:45]
v_cndmask_b32 v{H+1}, v{H+1}, v6, s[44:45]
v_cndmask_b32 v{H}, v{H}, v6, s[44:45]
""")
for nu in range(4):
    L = H + 4 * nu; t = T + 4 * nu
    a(f"""
v_alignbit_b32 v{t}, v{L+1}, v{L}, 16
v_alignbit_b32 v{t+1}, v{L+2}, v{L+1}, 16
v_mov_b32 v{t+2}, v{L+1}
v_mov_b32 v{t+3}, v{L+2}
v_mov_b32 v{L}, v{t+1}
v_alignbit_b32 v{L+1}, v{L+3}, v{L+2}, 16
ds_write_b128 v8, {vr(t,4)} offset:{E_B0 + 4096 * nu}
ds_write_b128 v8, {vr(L,4)} offset:{E_B0 + 4096 * nu + 16}
""")
a(f"""
s_waitcnt vmcnt(0)
s_mov_b64 exec, 1
buffer_store_dword v13, v4, s[28:31], s46 offen
s_mov_b64 exec, -1
buffer_load_dword v6, v5, s[28:31], s46 offen sc1
""")
stamp()
a(f"""
s_lshr_b32 s54, s36, 1                   ; ch
s_and_b32 s55, s36, 1                    ; hf
s_mul_i32 s56, s54, {E_CH}
s_lshl_b32 s57, s55, 10
s_add_u32 s56, s56, s57
v_lshl_add_u32 v8, v14, 3, s56
v_and_b32 v1, 15, v14
v_lshrrev_b32 v2, 4, v14
v_sub_u32 v7, v1, v2
s_lshl_b32 s57, s55, 3
s_sub_u32 s57, 16, s57
v_add_u32 v7, s57, v7                    ; x+16 for a=0
s_add_u32 s57, s54, 2
v_bfe_u32 v9, v7, 2, 2
v_xor_b32 v9, s57, v9
v_lshlrev_b32 v9, 4, v9
v_lshl_add_u32 v{WT}, v7, 6, v9
v_xor_b32 v{WT+1}, 32, v{WT}
v_add_u32 v7, -4, v7
v_bfe_u32 v9, v7, 2, 2
v_xor_b32 v9, s57, v9
v_lshlrev_b32 v9, 4, v9
v_lshl_add_u32 v{WT+2}, v7, 6, v9
v_xor_b32 v{WT+3}, 32, v{WT+2}
s_lshl_b32 s57, s36, 11
v_lshl_add_u32 v7, v14, 4, s57           ; v7 = w*2048 + 16*l
s_add_u32 s57, s57, {U_B}
s_mov_b32 m0, s57
s_mov_b32 s58, s42
s_mov_b32 s59, 0
s_waitcnt lgkmcnt(0)
s_barrier
""")
def afrag(kp, j): return AF + 32 * kp + 4 * j
def aread(kp):
    for j in range(8):
        off = E_B0 - 96 + 2048 * j + 512 * (kp >> 1) + 64 * (kp & 1)
        a(f"ds_read_b64 {vr(afrag(kp, j), 2)}, v8 offset:{off}")
        a(f"ds_read_b64 {vr(afrag(kp, j) + 2, 2)}, v8 offset:{off + 32}")
aread(0)
a(f"""
s_waitcnt vmcnt(0)
v_cmp_ne_u32 vcc, s52, v6
s_cbranch_vccnz L_A_poll1
L_A_go1:
buffer_load_dwordx4 v7, s[28:31], s58 offen sc1 lds
buffer_load_dwordx4 v7, s[28:31], s58 offen offset:1024 sc1 lds
global_load_dwordx4 {vr(Q,4)}, v3, s[4:5]
global_load_dwordx4 {vr(Q+4,4)}, v3, s[4:5] offset:1024
""")
stamp()
aread(1); aread(2); aread(3)
a("""
s_waitcnt vmcnt(2)
s_barrier
""")
stamp()
NB = 7
BR = [16, 20, 24, 28, 32, 36, 40]
seq = [(kp, m) for kp in range(4) for m in range(8)]
def bread(i):
    kp, m = seq[i]
    a(f"ds_read_b128 {vr(BR[i % NB], 4)}, v{WT + kp} offset:{U_B - 1024 + 1024 * m}")
PF = 5
for i in range(PF): bread(i)
for i, (kp, m) in enumerate(seq):
    a(f"s_waitcnt lgkmcnt({min(PF - 1, len(seq) - 1 - i)})")
    for j in range(8 - m):
        c = m + j
        srcc = "0" if i == 0 else vr(ACC + 4 * c, 4)
        a(f"v_mfma_f32_16x16x32_bf16 {vr(ACC + 4 * c, 4)}, {vr(afrag(kp, j), 4)}, {vr(BR[i % NB], 4)}, {srcc}")
        if j == 0 and i + PF < len(seq): bread(i + PF)
stamp()
Y = 16; RD = 32
a(f"""
s_lshl_b32 s57, s36, 12
v_lshl_add_u32 v9, v14, 4, s57
v_xor_b32 v11, 0x1000, v9
v_and_b32 v4, 3, v1
v_lshlrev_b32 v4, 5, v4
v_lshrrev_b32 v5, 2, v1
v_lshl_add_u32 v4, v5, 8, v4
v_and_b32 v5, 1, v2
v_lshl_add_u32 v4, v5, 10, v4
v_lshrrev_b32 v5, 1, v2
v_lshl_add_u32 v4, v5, 4, v4
s_cmp_eq_u32 s55, 0
s_cbranch_scc0 L_A_red1
""")
def red(send, keep):
    for z in range(4): a(f"ds_write_b128 v9, {vr(ACC + 4 * (send + z), 4)} offset:{R_B + 1024 * z}")
    a("s_waitcnt lgkmcnt(0)\ns_barrier")
    for z in range(4): a(f"ds_read_b128 {vr(RD + 4 * z, 4)}, v11 offset:{R_B + 1024 * z}")
    for z in range(4):
        a(f"s_waitcnt lgkmcnt({3 - z})")
        for i in range(4): a(f"v_add_f32 v{RD + 4 * z + i}, v{RD + 4 * z + i}, v{ACC + 4 * (keep + z) + i}")
red(4, 0)
a("s_branch L_A_red2\nL_A_red1:")
red(0, 4)
a("L_A_red2:")
for z in range(4):
    a(f"v_cvt_pk_bf16_f32 v{Y + 2 * z}, v{RD + 4 * z}, v{RD + 4 * z + 1}")
    a(f"v_cvt_pk_bf16_f32 v{Y + 2 * z + 1}, v{RD + 4 * z + 2}, v{RD + 4 * z + 3}")
a(f"""
s_lshl_b32 s56, s55, 12
s_lshl_b32 s57, s54, 7
s_add_u32 s56, s56, s57
s_add_u32 s56, s56, s42
v_permlane16_swap_b32 v{Y}, v{Y+2}
v_permlane16_swap_b32 v{Y+1}, v{Y+3}
v_permlane16_swap_b32 v{Y+4}, v{Y+6}
v_permlane16_swap_b32 v{Y+5}, v{Y+7}
s_cmp_lg_u32 s59, 0
s_cbranch_scc1 L_A_slow2
buffer_store_dwordx4 {vr(Y,4)}, v4, s[28:31], s56 offen
buffer_store_dwordx4 {vr(Y+4,4)}, v4, s[28:31], s56 offen offset:2048
L_A_st2:
""")
stamp()
QF, ZQ, DF = AF, AF + 16, AF + 32
a(f"""
s_lshl_b32 s56, s55, 8
s_lshl_b32 s57, s35, 3
s_add_u32 s56, s56, s57
s_lshl_b32 s57, s54, 2
s_add_u32 s56, s56, s57
v_mov_b32 v4, s56
s_lshr_b32 s56, s35, 4
s_lshl_b32 s56, s56, 8
s_lshl_b32 s57, s36, 6
s_add_u32 s56, s56, s57
v_lshl_add_u32 v5, v1, 2, s56
s_add_u32 s46, s46, {F_2}
s_mul_i32 s57, s36, 2080
s_add_u32 s57, s57, {T_B}
s_mov_b32 m0, s57
s_waitcnt vmcnt(2)
""")
for e in range(8):
    src = DD + e // 2
    a(f"v_and_b32 v{DF + e}, 0xffff0000, v{src}" if e & 1 else f"v_lshlrev_b32 v{DF + e}, 16, v{src}")
for row in range(2):
    for e in range(8):
        src = Q + 4 * row + e // 2
        a(f"v_and_b32 v{QF + 8 * row + e}, 0xffff0000, v{src}" if e & 1 else f"v_lshlrev_b32 v{QF + 8 * row + e}, 16, v{src}")
for e in range(8):
    a(f"v_and_b32 v{ZQ + e}, 0xffff0000, v{KV + e}")
    a(f"v_lshlrev_b32 v{ZQ + 8 + e}, 16, v{KV + e}")
a(f"""
s_waitcnt vmcnt(0)
s_mov_b64 exec, 1
s_cmp_lg_u32 s59, 0
s_cbranch_scc1 L_A_slowf2
buffer_store_dword v13, v4, s[28:31], s46 offen
L_A_f2:
s_mov_b64 exec, -1
buffer_load_dword v6, v5, s[28:31], s46 offen sc1
""")
stamp()
for i in range(16):
    a(f"v_mul_f32 v{ZQ + i}, v{ZQ + i}, v{DF + (i & 7)}")
for i in range(16):
    a(f"v_mul_f32 v{ZQ + i}, v{ZQ + i}, v{QF + i}")
a(f"""
v_and_b32 v7, 0x3ff, v3
v_lshlrev_b32 v3, 1, v3
v_sub_u32 v3, v3, v7
s_waitcnt vmcnt(0)
v_cmp_ne_u32 vcc, v13, v6
s_cbranch_vccnz L_A_poll2
L_A_go2:
buffer_load_dwordx4 v12, s[28:31], s48 offen sc1 lds
s_add_u32 s57, s57, 1040
s_mov_b32 m0, s57
v_add_u32 v10, {T_B}, v10
buffer_load_dwordx4 v12, s[28:31], s49 offen sc1 lds
""")
stamp()
a("""
s_waitcnt vmcnt(0)
s_barrier
""")
stamp()
YD, YF, O = 16, 24, 40
for e in range(0, 8, 2):
    a(f"ds_read2_b32 {vr(YD + e, 2)}, v10 offset0:{32 * e} offset1:{32 * e + 32}")
for e in range(0, 8, 2):
    a(f"s_waitcnt lgkmcnt({3 - e // 2})")
    for ee in (e, e + 1):
        a(f"v_lshlrev_b32 v{YF + ee}, 16, v{YD + ee}")
        a(f"v_and_b32 v{YF + 8 + ee}, 0xffff0000, v{YD + ee}")
        a(f"v_fmac_f32 v{ZQ + ee}, v{QF + ee}, v{YF + ee}")
        a(f"v_fmac_f32 v{ZQ + 8 + ee}, v{QF + 8 + ee}, v{YF + 8 + ee}")
    a(f"v_cvt_pk_bf16_f32 v{O + e // 2}, v{ZQ + e}, v{ZQ + e + 1}")
    a(f"v_cvt_pk_bf16_f32 v{O + 4 + e // 2}, v{ZQ + 8 + e}, v{ZQ + 8 + e + 1}")
a(f"""
global_store_dwordx4 v3, {vr(O,4)}, s[20:21]
global_store_dwordx4 v3, {vr(O+4,4)}, s[20:21] offset:2048
s_or_b32 s56, s35, s36
s_cmp_eq_u32 s56, 0
s_cbranch_scc0 L_A_end
v_mov_b32 v4, s41
v_mov_b32 v5, s40
s_mov_b64 exec, 1
buffer_store_dword v4, v5, s[28:31], 0 offen
s_mov_b64 exec, -1
L_A_end:
""")
if STAMPS:
    stamp(); a("s_waitcnt vmcnt(0)"); stamp(); stamps_out()
a("s_endpgm")

a(f"""
L_A_poll1:
s_mov_b32 s60, 0
L_A_poll1a:
buffer_load_dword v6, v5, s[28:31], s46 offen sc1
s_add_u32 s60, s60, 1
s_waitcnt vmcnt(0)
v_cmp_ne_u32 vcc, s52, v6
s_cbranch_vccz L_A_go1
s_and_b32 s61, s60, 15
s_cbranch_scc1 L_A_poll1a
s_add_u32 s61, s38, {WS_F + F_HELLO}
v_mov_b32 v9, s53
s_mov_b64 exec, 1
buffer_store_dword v13, v9, s[28:31], s61 offen sc1
s_mov_b64 exec, -1
v_and_b32 v9, 31, v14
v_lshlrev_b32 v9, 2, v9
buffer_load_dword v6, v9, s[28:31], s61 offen sc1
s_waitcnt vmcnt(0)
v_cmp_ne_u32 vcc, s52, v6
v_subrev_u32 v6, s41, v6
v_cmp_gt_u32 s[32:33], 16, v6
s_and_b64 vcc, vcc, s[32:33]
s_cbranch_vccnz L_A_slow1
s_cmp_lt_u32 s60, {SPIN_MAX}
s_cbranch_scc1 L_A_poll1a
s_branch L_A_go1
L_A_slow1:
s_mov_b32 s59, 1
s_add_u32 s48, s48, {WS_U2}
s_add_u32 s49, s49, {WS_U2}
buffer_store_dwordx4 {vr(UB0,4)}, v12, s[28:31], s48 offen sc1
buffer_store_dwordx4 {vr(UB0+4,4)}, v12, s[28:31], s49 offen sc1
s_add_u32 s48, s48, {WS_Y2 - WS_U2}
s_add_u32 s49, s49, {WS_Y2 - WS_U2}
s_add_u32 s58, s42, {WS_U2}
s_add_u32 s42, s42, {WS_Y2}
s_add_u32 s46, s46, {F_SLOW}
v_mov_b32 v13, s41
s_waitcnt vmcnt(0)
s_mov_b64 exec, 1
buffer_store_dword v13, v4, s[28:31], s46 offen sc1
s_mov_b64 exec, -1
s_mov_b32 s60, 0
L_A_poll1s:
buffer_load_dword v6, v5, s[28:31], s46 offen sc1
s_add_u32 s60, s60, 1
s_waitcnt vmcnt(0)
v_cmp_ne_u32 vcc, s41, v6
s_cbranch_vccz L_A_go1
s_cmp_lt_u32 s60, {SPIN_MAX}
s_cbranch_scc1 L_A_poll1s
s_branch L_A_go1
L_A_slow2:
buffer_store_dwordx4 {vr(Y,4)}, v4, s[28:31], s56 offen sc1
buffer_store_dwordx4 {vr(Y+4,4)}, v4, s[28:31], s56 offen offset:2048 sc1
s_branch L_A_st2
L_A_slowf2:
buffer_store_dword v13, v4, s[28:31], s46 offen sc1
s_branch L_A_f2
L_A_poll2:
s_mov_b32 s60, 0
L_A_poll2a:
buffer_load_dword v6, v5, s[28:31], s46 offen sc1
s_add_u32 s60, s60, 1
s_waitcnt vmcnt(0)
v_cmp_ne_u32 vcc, v13, v6
s_cbranch_vccz L_A_go2
s_cmp_lt_u32 s60, {SPIN_MAX}
s_cbranch_scc1 L_A_poll2a
s_branch L_A_go2
""")

nstamp[0] = 1
F1, XF, G0, GP = 16, 48, 80, 96
a(f"""
L_B:
s_and_b32 s37, s35, 1
s_lshl_b32 s38, s34, 1
s_add_u32 s37, s37, s38                  ; db
s_lshr_b32 s38, s35, 1                   ; s2
s_lshl_b32 s39, s38, 10
s_lshl_b32 s40, s37, 6
s_add_u32 s39, s39, s40
s_lshl_b32 s40, s36, 19
s_add_u32 s39, s39, s40
v_lshrrev_b32 v1, 2, v14
v_and_b32 v2, 3, v14
v_lshlrev_b32 v3, 14, v1
v_lshl_add_u32 v3, v2, 4, v3
v_add_u32 v3, s39, v3
v_add_u32 v4, 0x40000, v3
s_lshl_b32 s40, s36, 11
s_mov_b32 m0, s40
s_add_u32 s40, s40, 1024
s_mov_b32 s42, {WS_F + F_NONCE + 1024}
s_waitcnt lgkmcnt(0)
global_load_lds_dwordx4 v3, s[16:17]
s_mov_b32 m0, s40
s_load_dword s41, s[22:23], s42
global_load_lds_dwordx4 v4, s[16:17]
s_mov_b32 s28, s22
s_mov_b32 s29, s23
s_mov_b32 s24, s20
s_mov_b32 s25, s21
s_mov_b32 s26, 0x400000
v_and_b32 v5, 31, v14
v_lshrrev_b32 v6, 5, v14
v_lshlrev_b32 v7, 16, v6
v_lshl_add_u32 v7, v5, 2, v7
s_lshl_b32 s43, s37, 4
s_add_u32 s43, s43, s38
s_lshl_b32 s44, s43, 7
s_lshl_b32 s45, s36, 19
s_add_u32 s44, s44, s45
s_add_u32 s44, s44, {WS_G}
buffer_load_dword v15, v7, s[28:31], s44 offen sc1
s_lshl_b32 s45, s36, 5
v_add_u32 v8, s45, v5
v_lshrrev_b32 v9, 1, v8                  ; frequency
v_and_b32 v10, 1, v8
v_cmp_eq_u32 vcc, 1, v8
v_cvt_f32_u32 v11, v10
v_mul_f32 v11, 0x3e800000, v11           ; phase
v_and_b32 v12, 1, v9
v_cndmask_b32 v9, v9, 64, vcc
v_cndmask_b32 v11, v11, 0, vcc
v_mul_u32_u24 v12, 0x8000, v12
v_lshl_or_b32 v12, v12, 16, v12
v_cvt_f32_u32 v9, v9
v_mul_f32 v9, 0x3c000000, v9
v_cvt_f32_u32 v6, v6
v_mul_f32 v6, 4.0, v6
v_fmac_f32 v11, v9, v6
""")
stamp()
TMP = XF
for kap in range(4):
    for eps in range(8):
        c = 16 * kap + 8 * (eps >> 2) + (eps & 3)
        a(f"v_fmamk_f32 v{TMP + eps}, v9, {f2u(c)}, v11")
    for eps in range(8): a(f"v_cos_f32 v{TMP + eps}, v{TMP + eps}")
    for i in range(4): a(f"v_cvt_pk_bf16_f32 v{F1 + 4 * kap + i}, v{TMP + 2 * i}, v{TMP + 2 * i + 1}")
    for i in range(4): a(f"v_xor_b32 v{F1 + 16 + 4 * kap + i}, v12, v{F1 + 4 * kap + i}")
a(f"""
v_lshrrev_b32 v5, 5, v14
v_lshlrev_b32 v5, 8, v5
v_and_b32 v6, 3, v1
v_lshl_add_u32 v5, v6, 6, v5
v_bfe_u32 v6, v14, 4, 1
v_lshl_add_u32 v5, v6, 5, v5
v_lshl_add_u32 v5, v2, 3, v5
""")
stamp()
a(f"""
s_waitcnt vmcnt(1) lgkmcnt(0)
s_barrier
""")
stamp()
for i in range(16): a(f"ds_read_b64_tr_b16 {vr(XF + 2 * i, 2)}, v5 offset:{512 * i}")
a(f"s_add_u32 s41, s41, {NONCE_INC}")
for kap in range(8):
    a(f"s_waitcnt lgkmcnt({14 - 2 * kap})")
    a(f"v_mfma_f32_32x32x16_bf16 {vr(G0,16)}, {vr(F1 + 4 * kap, 4)}, {vr(XF + 4 * kap, 4)}, {'0' if kap == 0 else vr(G0,16)}")
a(f"""
s_lshl_b32 s46, s34, 3
s_lshr_b32 s47, s35, 2
s_add_u32 s46, s46, s47                  ; slot
s_and_b32 s47, s35, 1
s_bfe_u32 s48, s35, 0x10001              ; class
s_sub_u32 s49, 128, s46
s_cmp_eq_u32 s46, 0
s_cselect_b32 s49, 64, s49
s_cmp_eq_u32 s48, 0
s_cselect_b32 s49, s46, s49
s_lshl_b32 s47, s47, 10
s_add_u32 s49, s49, s47
v_mov_b32 v13, s41
""")
for j in range(4):
    for rb in range(2):
        a(f"v_cvt_pk_bf16_f32 v{GP + 2 * j + rb}, v{G0 + 4 * j + 2 * rb}, v{G0 + 4 * j + 2 * rb + 1}")
        a(f"buffer_store_dword v{GP + 2 * j + rb}, v7, s[28:31], s44 offen sc1")
        a(f"s_add_u32 s44, s44, {32768 if rb == 0 else 3 * 32768}")
stamp()
FA, FB, FC, TW = 16, 20, 28, 44
TMP = 64
a(f"""
v_and_b32 v1, 15, v14                    ; n / m
v_lshrrev_b32 v2, 4, v14                 ; kg
v_cvt_f32_u32 v3, v2
v_mul_f32 v3, 4.0, v3                    ; 4kg
v_cvt_f32_u32 v4, v1
; stage a: amp[pi] * cos(t*s2/2048 + po/4 + psi[pi])
v_lshrrev_b32 v5, 1, v1
v_lshl_add_u32 v5, v5, 7, s49
v_cvt_f32_u32 v5, v5
v_mul_f32 v5, 0x3a000000, v5             ; t/2048
v_and_b32 v6, 1, v1
v_cvt_f32_u32 v6, v6
v_mul_f32 v6, 0x3e800000, v6
v_fmac_f32 v6, v5, v3
s_cmp_eq_u32 s48, 0
s_cselect_b32 s50, 0xbe800000, 0x3e800000
s_cselect_b32 s51, 0x0000ffff, 0xffff0000
s_cmp_eq_u32 s46, 0
s_cselect_b32 s50, 0, s50
s_cselect_b32 s51, s51, -1
""".replace("s_cselect_b32 s50, 0xbe800000, 0x3e800000", "s_mov_b32 s50, 0x3e800000\ns_cselect_b32 s50, 0xbe800000, s50")
   .replace("s_cselect_b32 s51, 0x0000ffff, 0xffff0000", "s_mov_b32 s51, 0xffff0000\ns_cselect_b32 s51, 0x0000ffff, s51"))
for i in range(4):
    a(f"v_fmamk_f32 v{TMP + 2 * i}, v5, {f2u(i)}, v6")
    a(f"v_add_f32 v{TMP + 2 * i + 1}, s50, v{TMP + 2 * i}")
for i in range(8): a(f"v_cos_f32 v{TMP + i}, v{TMP + i}")
for i in range(4):
    a(f"v_cvt_pk_bf16_f32 v{FA + i}, v{TMP + 2 * i}, v{TMP + 2 * i + 1}")
for i in range(4): a(f"v_and_b32 v{FA + i}, s51, v{FA + i}")
a("v_mul_f32 v5, 0x3d800000, v4\nv_mul_f32 v6, v5, v3")
for i in range(4): a(f"v_fmamk_f32 v{TMP + i}, v5, {f2u(i)}, v6")
for i in range(4):
    a(f"v_sin_f32 v{TMP + 4 + i}, v{TMP + i}")
    a(f"v_cos_f32 v{TMP + i}, v{TMP + i}")
for i in range(4):
    a(f"v_cvt_pk_bf16_f32 v{FB + i}, v{TMP + i}, v{TMP + 4 + i}")
    a(f"v_cvt_pk_bf16_f32 v{FB + 4 + i}, -v{TMP + 4 + i}, v{TMP + i}")
a(f"""
s_lshl_b32 s50, s36, 10
s_lshl_b32 s51, s43, 2
s_add_u32 s50, s50, s51
v_mov_b32 v8, s50
s_lshr_b32 s50, s46, 4
s_lshl_b32 s50, s50, 10
s_lshl_b32 s51, s36, 8
s_add_u32 s50, s50, s51
v_lshl_add_u32 v9, v14, 2, s50
s_mov_b32 s52, {WS_F + F_B}
""")
a("v_mul_f32 v5, 0x3b000000, v4\nv_mul_f32 v6, v5, v3")
for mt in range(2):
    for r in range(4): a(f"v_fmamk_f32 v{TW + 4 * mt + r}, v5, {f2u(16 * mt + r)}, v6")
for i in range(8):
    a(f"v_sin_f32 v{TW + 8 + i}, v{TW + i}")
    a(f"v_cos_f32 v{TW + i}, v{TW + i}")
a(f"""
s_waitcnt vmcnt(0)
s_mov_b64 exec, 1
buffer_store_dword v13, v8, s[28:31], s52 offen sc1
s_mov_b64 exec, -1
buffer_load_dword v10, v9, s[28:31], s52 offen sc1
""")
stamp()
for nt in range(2):
    a(f"v_fmaak_f32 v5, v4, v{TMP + 8}, {f2u(0.5 * nt)}".replace(f"v{TMP + 8}", "v11") if False else
      (f"v_mul_f32 v5, 0x3d000000, v4" if nt == 0 else "v_add_f32 v5, 0.5, v5"))
    a("v_mul_f32 v6, v5, v3")
    for mt in range(2):
        for r in range(4): a(f"v_fmamk_f32 v{TMP + r}, v5, {f2u(16 * mt + r)}, v6")
        for r in range(4):
            a(f"v_sin_f32 v{TMP + 4 + r}, v{TMP + r}")
            a(f"v_cos_f32 v{TMP + r}, v{TMP + r}")
        for r in range(4): a(f"v_cvt_pk_bf16_f32 v{FC + 8 * nt + 4 * mt + r}, v{TMP + r}, v{TMP + 4 + r}")
GL, VA = 64, 96
a(f"""
v_and_b32 v3, 7, v1
v_lshrrev_b32 v4, 3, v1
v_lshlrev_b32 v5, 4, v3
v_lshl_add_u32 v5, v2, 9, v5
v_lshl_add_u32 v5, v4, 12, v5
s_lshl_b32 s50, s46, 15
s_lshl_b32 s51, s36, 13
s_add_u32 s50, s50, s51
s_add_u32 s50, s50, {WS_G}
v_xor_b32 v6, s36, v3
v_lshlrev_b32 v6, 4, v6
v_lshl_add_u32 v6, v3, 8, v6
v_lshl_add_u32 v6, v4, 3, v6
v_lshl_add_u32 v6, v2, 12, v6
v_xor_b32 v7, 64, v6
v_lshrrev_b32 v3, 2, v1
v_xor_b32 v3, v3, v2
v_lshlrev_b32 v3, 4, v3
v_lshl_add_u32 v3, v1, 6, v3
s_lshl_b32 s51, s36, 12
v_add_u32 v3, s51, v3
v_xor_b32 v4, 64, v3
v_and_b32 v11, 1, v2
v_lshlrev_b32 v11, 9, v11
v_lshl_add_u32 v11, v1, 5, v11
v_lshrrev_b32 v12, 1, v2
v_lshl_add_u32 v11, v12, 4, v11
s_lshl_b32 s53, s36, 8
s_add_u32 s53, s53, s49
s_lshl_b32 s53, s53, 11
s_add_u32 s54, s53, 0x40000
s_waitcnt vmcnt(0)
v_cmp_ne_u32 vcc, s41, v10
s_cbranch_vccnz L_B_poll
L_B_go:
""")
for g in range(2):
    for i in range(4):
        a(f"buffer_load_dwordx4 {vr(GL + 16 * g + 4 * i, 4)}, v5, s[28:31], s50 offen offset:{2048 * g + 128 * i} sc1")
stamp()
for g in range(2):
    a(f"s_waitcnt vmcnt({4 - 4 * g})")
    b = GL + 16 * g
    for i in range(4):
        for e in range(i + 1, 4): a(f"v_swap_b32 v{b + 4 * i + e}, v{b + 4 * e + i}")
    for e in range(4):
        a(f"v_mfma_f32_16x16x32_bf16 {vr(VA + 16 * g + 4 * e, 4)}, {vr(FA,4)}, {vr(b + 4 * e, 4)}, 0")
stamp()
VP = 64
for e in range(4):
    for rb in range(2):
        for g in range(2):
            s = VA + 16 * g + 4 * e + 2 * rb
            a(f"v_cvt_pk_bf16_f32 v{VP + 4 * e + 2 * rb + g}, v{s}, v{s + 1}")
        a(f"ds_write_b64 v{7 if e & 1 else 6}, {vr(VP + 4 * e + 2 * rb, 2)} offset:{V_B + 2048 * rb + 128 * (e >> 1)}")
a("s_waitcnt lgkmcnt(0)\ns_barrier")
stamp()
VR, W = 64, 96
for z in range(2):
    for mt in range(2):
        a(f"ds_read_b128 {vr(VR + 8 * z + 4 * mt, 4)}, v{4 if mt else 3} offset:{V_B + 2048 * z + 1024 * mt}")
for z in range(2):
    for mt in range(2):
        a(f"s_waitcnt lgkmcnt({3 - 2 * z - mt})")
        for po in range(2):
            a(f"v_mfma_f32_16x16x32_bf16 {vr(W + 16 * z + 8 * mt + 4 * po, 4)}, {vr(VR + 8 * z + 4 * mt, 4)}, {vr(FB + 4 * po, 4)}, 0")
U, UT, YA, YP = 64, 80, 128, 144
for z in range(2):
    for mt in range(2):
        wr = W + 16 * z + 8 * mt; wi = wr + 4; c = TW + 4 * mt; s = TW + 8 + 4 * mt
        for r in range(4): a(f"v_mul_f32 v{UT + r}, v{c + r}, v{wr + r}")
        for r in range(4): a(f"v_mul_f32 v{UT + 4 + r}, v{c + r}, v{wi + r}")
        for r in range(4): a(f"v_fmac_f32 v{UT + r}, v{s + r}, v{wi + r}")
        for r in range(4): a(f"v_fma_f32 v{UT + 4 + r}, -v{s + r}, v{wr + r}, v{UT + 4 + r}")
        for r in range(4): a(f"v_cvt_pk_bf16_f32 v{U + 8 * z + 4 * mt + r}, v{UT + r}, v{UT + 4 + r}")
        for nt in range(2):
            d = vr(YA + 8 * z + 4 * nt, 4)
            a(f"v_mfma_f32_16x16x32_bf16 {d}, {vr(U + 8 * z + 4 * mt, 4)}, {vr(FC + 8 * nt + 4 * mt, 4)}, {'0' if mt == 0 else d}")
for z in range(2):
    for nt in range(2):
        for j in range(2):
            s = YA + 8 * z + 4 * nt + 2 * j
            a(f"v_cvt_pk_bf16_f32 v{YP + 4 * z + 2 * nt + j}, v{s}, v{s + 1}")
    a(f"v_permlane16_swap_b32 v{YP + 4 * z}, v{YP + 4 * z + 2}")
    a(f"v_permlane16_swap_b32 v{YP + 4 * z + 1}, v{YP + 4 * z + 3}")
    a(f"buffer_store_dwordx4 {vr(YP + 4 * z, 4)}, v11, s[24:27], s{53 + z} offen offset:1024")
a(f"""
s_sub_u32 s56, s2, 256
s_or_b32 s56, s56, s36
s_cbranch_scc1 L_B_end
v_mov_b32 v5, s42
s_mov_b64 exec, 1
buffer_store_dword v13, v5, s[28:31], 0 offen
s_mov_b64 exec, -1
L_B_end:
""")
if STAMPS:
    stamp(); a("s_waitcnt vmcnt(0)"); stamp(); stamps_out()
a(f"""
L_end:
s_endpgm
L_B_poll:
s_mov_b32 s60, 0
L_B_polla:
buffer_load_dword v10, v9, s[28:31], s52 offen sc1
s_add_u32 s60, s60, 1
s_waitcnt vmcnt(0)
v_cmp_ne_u32 vcc, s41, v10
s_cbranch_vccz L_B_go
s_cmp_lt_u32 s60, {SPIN_MAX}
s_cbranch_scc1 L_B_polla
s_branch L_B_go
""")

body = a.finish()
ref = open(f"cdna_kernels/{NAME}.s.ref").read().split("\n")
hdr = [l for l in ref if l.startswith(";") and "@launch" not in l]
out = "\n".join(hdr) + f"""
; @launch grid=(512,1,1) block=(256,1,1) lds={LDS_BYTES}
.amdgcn_target "amdgcn-amd-amdhsa--gfx950"
.text
.globl {NAME}_kernel
.p2align 8
.type {NAME}_kernel,@function
""" + body + f""".p2align 8
.fill 4096, 4, 0xbf810000
.section .rodata,"a"
.p2align 6
.amdhsa_kernel {NAME}_kernel
  .amdhsa_next_free_vgpr 256
  .amdhsa_next_free_sgpr 102
  .amdhsa_accum_offset 256
  .amdhsa_group_segment_fixed_size 0
  .amdhsa_kernarg_size 112
  .amdhsa_user_sgpr_count 2
  .amdhsa_user_sgpr_kernarg_segment_ptr 1
  .amdhsa_system_sgpr_workgroup_id_x 1
.end_amdhsa_kernel
"""
dst = [x for x in sys.argv[1:] if not x.startswith("--")]
open(dst[0] if dst else f"cdna_kernels/{NAME}.s", "w").write(out)
print("nops inserted:", a.nops, file=sys.stderr)
```

```python
import sys, struct
from asmlib import Asm
NAME = "concat_heads__ssm_conv_h3__spectral_fnet__prompt"
STAMPS = "--stamps" in sys.argv
FORCE_SLOW = "--slow" in sys.argv
PROBE = [x[8:] for x in sys.argv if x.startswith("--probe=")]
PROBE = PROBE[0].split(",") if PROBE else None
SLOWPAD = "--slowpad" in sys.argv
role = ["A"]

WS_U, WS_G, WS_F, WS_U2, WS_Y2, WS_ST, WS_SIZE = 0x0, 0x200000, 0x400000, 0x600000, 0x800000, 0xA00000, 0xC00000
F_1, F_2, F_HELLO, F_SLOW, F_NONCE, F_B = 0, 4096, 8192, 16384, 32768, 40960
NONCE_INC = 0x9E3779B0
E_CH, E_B0 = 16512, 128
U_B = 34048
T_B = 42240
R_B = 50560
LDS_BYTES = 66944
X_B, V_B = 0, 8192
SPIN_MAX = 1 << 18

def f2u(x): return "0x%08x" % struct.unpack("<I", struct.pack("<f", x))[0]
def vr(a, n=1): return "v%d" % a if n == 1 else "v[%d:%d]" % (a, a + n - 1)

a = Asm()
nstamp = [0]
def probe_end():
    if not PROBE: return
    lab = "L_probe_" + role[0]
    a("s_waitcnt vmcnt(0) lgkmcnt(0)")
    if PROBE[1] == "end" and PROBE[0] == role[0]:
        a("s_memrealtime s[66:67]\ns_waitcnt lgkmcnt(0)")
    if PROBE[0] == role[0]:
        a("s_sub_u32 s66, s66, s62\ns_lshl_b32 s66, s66, 2\ns_add_u32 s66, s66, 3000")
    else:
        a("s_mov_b32 s66, 3000")
    a(f"""{lab}:
s_sleep 4
s_memrealtime s[68:69]
s_waitcnt lgkmcnt(0)
s_sub_u32 s68, s68, s62
s_cmp_lt_u32 s68, s66
s_cbranch_scc1 {lab}""")
def stamp():
    if PROBE:
        i = nstamp[0]; nstamp[0] += 1
        if PROBE[0] == role[0] and PROBE[1] == str(i): a("s_memrealtime s[66:67]")
    if STAMPS:
        i = nstamp[0]; nstamp[0] += 1
        a(f"s_memtime s[{64 + 2 * i}:{65 + 2 * i}]")
def stamps_out():
    if not STAMPS: return
    n = nstamp[0]
    a("s_waitcnt lgkmcnt(0)")
    a("v_mov_b32 v1, 0")
    a("v_writelane_b32 v1, s62, 0")
    for i in range(n):
        a(f"s_sub_u32 s60, s{64 + 2 * i}, s64")
        a(f"v_writelane_b32 v1, s60, {i + 1}")
    a(f"""
s_lshl_b32 s60, s2, 10
s_add_u32 s60, s60, {WS_ST}
v_lshlrev_b32 v2, 2, v0
buffer_store_dword v1, v2, s[28:31], s60 offen
""")

a(f"""
{NAME}_kernel:
s_cmp_ge_u32 s2, 512
s_cbranch_scc1 L_end
s_load_dwordx16 s[4:19], s[0:1], 0
s_load_dwordx2 s[20:21], s[0:1], 88
s_load_dwordx2 s[22:23], s[0:1], 104
""")
if STAMPS or PROBE: a("s_memrealtime s[62:63]")
stamp()
a(f"""
s_getpc_b64 s[32:33]
s_and_b32 s34, s2, 7
s_bfe_u32 s35, s2, 0x50003
v_lshrrev_b32 v1, 6, v0
s_lshl_b32 s37, s35, 9
v_lshl_add_u32 v2, v1, 7, s37
v_readfirstlane_b32 s36, v1
global_load_dword v15, v2, s[32:33]
s_mov_b32 s27, 0x20000
s_mov_b32 s30, {WS_SIZE}
s_mov_b32 s31, 0x20000
v_and_b32 v14, 63, v0                    ; lane
s_cmp_ge_u32 s2, 256
s_cbranch_scc1 L_B
""")

K, VV, WT, H, DD, Q, KV, ACC, AF = 16, 36, 44, 60, 76, 80, 88, 96, 128
a(f"""
s_setprio 1
v_lshrrev_b32 v1, 3, v0                  ; tp
v_and_b32 v2, 7, v0                      ; q
s_lshl_b32 s37, s35, 16
s_lshl_b32 s38, s34, 7
s_add_u32 s37, s37, s38
v_lshlrev_b32 v3, 11, v1
v_lshl_add_u32 v3, v2, 4, v3
v_add_u32 v3, s37, v3
v_add_u32 v4, 0xfffff400, v3
v_add_u32 v5, 0xfffff800, v3
v_add_u32 v6, 0xfffffc00, v3
s_lshl_b32 s39, s34, 9
v_lshl_add_u32 v7, v2, 6, s39
s_mov_b32 s26, 0x200000
s_add_u32 s40, s38, {WS_F + F_NONCE}
s_waitcnt lgkmcnt(0)
s_mov_b32 s24, s6
s_mov_b32 s25, s7
s_load_dword s41, s[22:23], s40
buffer_load_dwordx4 {vr(K,4)}, v4, s[24:27], 0 offen
buffer_load_dwordx4 {vr(K+4,4)}, v5, s[24:27], 0 offen
buffer_load_dwordx4 {vr(K+8,4)}, v6, s[24:27], 0 offen
buffer_load_dwordx4 {vr(K+12,4)}, v3, s[24:27], 0 offen
buffer_load_dwordx4 {vr(K+16,4)}, v3, s[24:27], 0 offen offset:1024
global_load_dwordx4 {vr(WT,4)}, v7, s[10:11]
global_load_dwordx4 {vr(WT+4,4)}, v7, s[10:11] offset:16
global_load_dwordx4 {vr(WT+8,4)}, v7, s[10:11] offset:32
global_load_dwordx4 {vr(WT+12,4)}, v7, s[10:11] offset:48
global_load_dwordx4 {vr(VV,4)}, v3, s[8:9]
global_load_dwordx4 {vr(VV+4,4)}, v3, s[8:9] offset:1024
s_mov_b32 s28, s22
s_mov_b32 s29, s23
; --- h loads
s_lshl_b32 s42, s34, 18
s_lshl_b32 s43, s35, 13
s_add_u32 s42, s42, s43
v_lshrrev_b32 v4, 7, v0                  ; ch
v_and_b32 v5, 127, v0                    ; T'
v_lshlrev_b32 v6, 12, v4
v_lshl_add_u32 v6, v5, 3, v6
v_add_u32 v6, s42, v6
v_cmp_eq_u32 s[44:45], 0, v5
v_add_u32 v7, 8, v6
v_cndmask_b32 v7, v6, v7, s[44:45]
global_load_dwordx4 {vr(H,4)}, v7, s[12:13] offset:-8
global_load_dwordx4 {vr(H+4,4)}, v6, s[12:13] offset:1016
global_load_dwordx4 {vr(H+8,4)}, v6, s[12:13] offset:2040
global_load_dwordx4 {vr(H+12,4)}, v6, s[12:13] offset:3064
; --- make the own box and the flag lines resident in L2 (values are not used)
v_lshlrev_b32 v7, 5, v0
buffer_load_dword v15, v7, s[28:31], s42 offen sc1
s_add_u32 s46, s39, {WS_F}
v_lshrrev_b32 v7, 5, v14
v_lshlrev_b32 v7, 12, v7
s_lshl_b32 s47, s36, 7
v_add_u32 v7, s47, v7
buffer_load_dword v15, v7, s[28:31], s46 offen sc1
v_lshl_add_u32 v7, v2, 4, s38
global_load_dwordx4 {vr(DD,4)}, v7, s[14:15]
; --- table write address, zero pads
v_mul_u32_u24 v4, {E_CH}, v4
v_lshl_add_u32 v8, v5, 5, v4
v_and_b32 v5, 31, v0
v_lshl_add_u32 v4, v5, 2, v4
v_mov_b32 v6, 0
ds_write_b32 v4, v6
v_lshlrev_b32 v4, 2, v0
ds_write_b32 v4, v6 offset:{U_B - 1024}
; --- transposition image addresses
v_mul_u32_u24 v9, 1040, v2
v_lshl_add_u32 v10, v1, 2, v9
v_xor_b32 v4, 3, v1
v_lshl_add_u32 v9, v4, 2, v9
s_and_b32 s48, s35, 3
v_xor_b32 v4, s48, v14
v_and_b32 v5, 1, v4
v_lshlrev_b32 v5, 7, v5                  ; ch*128
v_and_b32 v4, 2, v4
v_lshl_add_u32 v5, v4, 3, v5             ; + parity*16
v_and_b32 v4, 12, v14
v_lshl_add_u32 v5, v4, 3, v5             ; + xl*32
v_lshrrev_b32 v4, 4, v14
v_lshl_add_u32 v5, v4, 8, v5             ; + (L>>4)*256
s_mul_i32 s48, s36, 2080
v_add_u32 v11, s48, v5                   ; v11 = image re-read address (z=1: +1040)
v_and_b32 v5, 15, v14
v_lshlrev_b32 v5, 4, v5
v_lshl_add_u32 v12, v4, 13, v5           ; v12 = (L>>4)*8192 + 16*(L&15)
s_lshl_b32 s48, s34, 18
s_lshl_b32 s49, s36, 16
s_add_u32 s48, s48, s49
s_lshl_b32 s49, s35, 8
s_add_u32 s48, s48, s49
s_add_u32 s49, s48, 32768
s_mov_b32 s50, 0x05040100
s_mov_b32 s51, 0x07060302
s_getreg_b32 s52, hwreg(HW_REG_XCC_ID, 0, 4)
""")
if FORCE_SLOW: a("s_and_b32 s52, s35, 1")
stamp()
P = ACC
a("s_waitcnt vmcnt(13)")
stamp()
for p in range(4):
    for e in range(8):
        a(f"v_perm_b32 v{P + 8 * p + e}, v{K + 4 * p + e // 2}, v{K + 4 * (p + 1) + e // 2}, s{50 + (e & 1)}")
a(f"""
s_waitcnt lgkmcnt(0)
s_add_u32 s41, s41, {NONCE_INC}
s_add_u32 s52, s52, s41
s_waitcnt vmcnt(9)
""")
KS = AF
for e in range(8):
    a(f"v_dot2_f32_bf16 v{KS + e}, v{P + 16 + e}, v{WT + 2 * e}, 0")
    a(f"v_dot2_f32_bf16 v{KS + 8 + e}, v{P + 24 + e}, v{WT + 2 * e}, 0")
for e in range(8):
    a(f"v_dot2_f32_bf16 v{KS + e}, v{P + e}, v{WT + 2 * e + 1}, v{KS + e}")
    a(f"v_dot2_f32_bf16 v{KS + 8 + e}, v{P + 8 + e}, v{WT + 2 * e + 1}, v{KS + 8 + e}")
a("s_waitcnt vmcnt(7)")
stamp()
VF = AF + 16
for row in range(2):
    for e in range(8):
        src = VV + 4 * row + e // 2
        a(f"v_and_b32 v{VF + 8 * row + e}, 0xffff0000, v{src}" if e & 1 else f"v_lshlrev_b32 v{VF + 8 * row + e}, 16, v{src}")
for e in range(8):
    a(f"v_mul_f32 v{KS + e}, v{KS + e}, v{VF + e}")
    a(f"v_mul_f32 v{KS + 8 + e}, v{KS + 8 + e}, v{VF + 8 + e}")
    a(f"v_cvt_pk_bf16_f32 v{KV + e}, v{KS + 8 + e}, v{KS + e}")
a(f"v_add_u32 v9, {T_B}, v9")
for e in range(0, 8, 2):
    a(f"ds_write2_b32 v9, v{KV + e}, v{KV + e + 1} offset0:{32 * e} offset1:{32 * e + 32}")
UB0 = VV
a(f"""
v_mov_b32 v13, s52
s_lshl_b32 s53, s35, 2
s_waitcnt lgkmcnt(0)
s_barrier
ds_read_b128 {vr(UB0,4)}, v11 offset:{T_B}
ds_read_b128 {vr(UB0+4,4)}, v11 offset:{T_B + 1040}
s_add_u32 s54, s53, s47
v_mov_b32 v4, s54
s_lshr_b32 s54, s35, 3
s_lshl_b32 s54, s54, 7
v_and_b32 v5, 31, v14
v_lshl_add_u32 v5, v5, 2, s54
s_waitcnt lgkmcnt(1)
buffer_store_dwordx4 {vr(UB0,4)}, v12, s[28:31], s48 offen
s_waitcnt lgkmcnt(0)
buffer_store_dwordx4 {vr(UB0+4,4)}, v12, s[28:31], s49 offen
""")
stamp()
a("s_waitcnt vmcnt(5)")
stamp()
T = K
a(f"""
v_cndmask_b32 v{H+3}, v{H+3}, v{H+1}, s[44:45]
v_cndmask_b32 v{H+2}, v{H+2}, v{H}, s[44:45]
v_cndmask_b32 v{H+1}, v{H+1}, v6, s[44:45]
v_cndmask_b32 v{H}, v{H}, v6, s[44:45]
""")
for nu in range(4):
    L = H + 4 * nu; t = T + 4 * nu
    a(f"""
v_alignbit_b32 v{t}, v{L+1}, v{L}, 16
v_alignbit_b32 v{t+1}, v{L+2}, v{L+1}, 16
v_mov_b32 v{t+2}, v{L+1}
v_mov_b32 v{t+3}, v{L+2}
v_mov_b32 v{L}, v{t+1}
v_alignbit_b32 v{L+1}, v{L+3}, v{L+2}, 16
ds_write_b128 v8, {vr(t,4)} offset:{E_B0 + 4096 * nu}
ds_write_b128 v8, {vr(L,4)} offset:{E_B0 + 4096 * nu + 16}
""")
a(f"""
s_waitcnt vmcnt(0)
s_mov_b64 exec, 1
buffer_store_dword v13, v4, s[28:31], s46 offen
s_mov_b64 exec, -1
buffer_load_dword v6, v5, s[28:31], s46 offen sc1
""")
stamp()
a(f"""
s_lshr_b32 s54, s36, 1                   ; ch
s_and_b32 s55, s36, 1                    ; hf
s_mul_i32 s56, s54, {E_CH}
s_lshl_b32 s57, s55, 10
s_add_u32 s56, s56, s57
v_lshl_add_u32 v8, v14, 3, s56
v_and_b32 v1, 15, v14
v_lshrrev_b32 v2, 4, v14
v_sub_u32 v7, v1, v2
s_lshl_b32 s57, s55, 3
s_sub_u32 s57, 16, s57
v_add_u32 v7, s57, v7                    ; x+16 for a=0
s_add_u32 s57, s54, 2
v_bfe_u32 v9, v7, 2, 2
v_xor_b32 v9, s57, v9
v_lshlrev_b32 v9, 4, v9
v_lshl_add_u32 v{WT}, v7, 6, v9
v_xor_b32 v{WT+1}, 32, v{WT}
v_add_u32 v7, -4, v7
v_bfe_u32 v9, v7, 2, 2
v_xor_b32 v9, s57, v9
v_lshlrev_b32 v9, 4, v9
v_lshl_add_u32 v{WT+2}, v7, 6, v9
v_xor_b32 v{WT+3}, 32, v{WT+2}
s_lshl_b32 s57, s36, 11
v_lshl_add_u32 v7, v14, 4, s57           ; v7 = w*2048 + 16*l
s_add_u32 s57, s57, {U_B}
s_mov_b32 m0, s57
s_mov_b32 s58, s42
s_mov_b32 s59, 0
s_waitcnt lgkmcnt(0)
s_barrier
""")
def afrag(kp, j): return AF + 32 * kp + 4 * j
def aread(kp):
    for j in range(8):
        off = E_B0 - 96 + 2048 * j + 512 * (kp >> 1) + 64 * (kp & 1)
        a(f"ds_read_b64 {vr(afrag(kp, j), 2)}, v8 offset:{off}")
        a(f"ds_read_b64 {vr(afrag(kp, j) + 2, 2)}, v8 offset:{off + 32}")
aread(0)
a(f"""
s_waitcnt vmcnt(0)
v_cmp_ne_u32 vcc, s52, v6
s_cbranch_vccnz L_A_poll1
L_A_go1:
buffer_load_dwordx4 v7, s[28:31], s58 offen sc1 lds
buffer_load_dwordx4 v7, s[28:31], s58 offen offset:1024 sc1 lds
global_load_dwordx4 {vr(Q,4)}, v3, s[4:5]
global_load_dwordx4 {vr(Q+4,4)}, v3, s[4:5] offset:1024
""")
stamp()
aread(1); aread(2); aread(3)
a("""
s_waitcnt vmcnt(2)
s_barrier
""")
stamp()
NB = 7
BR = [16, 20, 24, 28, 32, 36, 40]
seq = [(kp, m) for kp in range(4) for m in range(8)]
def bread(i):
    kp, m = seq[i]
    a(f"ds_read_b128 {vr(BR[i % NB], 4)}, v{WT + kp} offset:{U_B - 1024 + 1024 * m}")
PF = 5
for i in range(PF): bread(i)
for i, (kp, m) in enumerate(seq):
    a(f"s_waitcnt lgkmcnt({min(PF - 1, len(seq) - 1 - i)})")
    for j in range(8 - m):
        c = m + j
        srcc = "0" if i == 0 else vr(ACC + 4 * c, 4)
        a(f"v_mfma_f32_16x16x32_bf16 {vr(ACC + 4 * c, 4)}, {vr(afrag(kp, j), 4)}, {vr(BR[i % NB], 4)}, {srcc}")
        if j == 0 and i + PF < len(seq): bread(i + PF)
stamp()
Y = 16; RD = 32
a(f"""
s_lshl_b32 s57, s36, 12
v_lshl_add_u32 v9, v14, 4, s57
v_xor_b32 v11, 0x1000, v9
v_and_b32 v4, 3, v1
v_lshlrev_b32 v4, 5, v4
v_lshrrev_b32 v5, 2, v1
v_lshl_add_u32 v4, v5, 8, v4
v_and_b32 v5, 1, v2
v_lshl_add_u32 v4, v5, 10, v4
v_lshrrev_b32 v5, 1, v2
v_lshl_add_u32 v4, v5, 4, v4
s_cmp_eq_u32 s55, 0
s_cbranch_scc0 L_A_red1
""")
def red(send, keep):
    for z in range(4): a(f"ds_write_b128 v9, {vr(ACC + 4 * (send + z), 4)} offset:{R_B + 1024 * z}")
    a("s_waitcnt lgkmcnt(0)\ns_barrier")
    for z in range(4): a(f"ds_read_b128 {vr(RD + 4 * z, 4)}, v11 offset:{R_B + 1024 * z}")
    for z in range(4):
        a(f"s_waitcnt lgkmcnt({3 - z})")
        for i in range(4): a(f"v_add_f32 v{RD + 4 * z + i}, v{RD + 4 * z + i}, v{ACC + 4 * (keep + z) + i}")
red(4, 0)
a("s_branch L_A_red2\nL_A_red1:")
red(0, 4)
a("L_A_red2:")
for z in range(4):
    a(f"v_cvt_pk_bf16_f32 v{Y + 2 * z}, v{RD + 4 * z}, v{RD + 4 * z + 1}")
    a(f"v_cvt_pk_bf16_f32 v{Y + 2 * z + 1}, v{RD + 4 * z + 2}, v{RD + 4 * z + 3}")
a(f"""
s_lshl_b32 s56, s55, 12
s_lshl_b32 s57, s54, 7
s_add_u32 s56, s56, s57
s_add_u32 s56, s56, s42
v_permlane16_swap_b32 v{Y}, v{Y+2}
v_permlane16_swap_b32 v{Y+1}, v{Y+3}
v_permlane16_swap_b32 v{Y+4}, v{Y+6}
v_permlane16_swap_b32 v{Y+5}, v{Y+7}
s_cmp_lg_u32 s59, 0
s_cbranch_scc1 L_A_slow2
buffer_store_dwordx4 {vr(Y,4)}, v4, s[28:31], s56 offen
buffer_store_dwordx4 {vr(Y+4,4)}, v4, s[28:31], s56 offen offset:2048
L_A_st2:
""")
stamp()
QF, ZQ, DF = AF, AF + 16, AF + 32
a(f"""
s_lshl_b32 s56, s55, 8
s_lshl_b32 s57, s35, 3
s_add_u32 s56, s56, s57
s_lshl_b32 s57, s54, 2
s_add_u32 s56, s56, s57
v_mov_b32 v4, s56
s_lshr_b32 s56, s35, 4
s_lshl_b32 s56, s56, 8
s_lshl_b32 s57, s36, 6
s_add_u32 s56, s56, s57
v_lshl_add_u32 v5, v1, 2, s56
s_add_u32 s46, s46, {F_2}
s_mul_i32 s57, s36, 2080
s_add_u32 s57, s57, {T_B}
s_mov_b32 m0, s57
s_waitcnt vmcnt(2)
""")
for e in range(8):
    src = DD + e // 2
    a(f"v_and_b32 v{DF + e}, 0xffff0000, v{src}" if e & 1 else f"v_lshlrev_b32 v{DF + e}, 16, v{src}")
for row in range(2):
    for e in range(8):
        src = Q + 4 * row + e // 2
        a(f"v_and_b32 v{QF + 8 * row + e}, 0xffff0000, v{src}" if e & 1 else f"v_lshlrev_b32 v{QF + 8 * row + e}, 16, v{src}")
for e in range(8):
    a(f"v_and_b32 v{ZQ + e}, 0xffff0000, v{KV + e}")
    a(f"v_lshlrev_b32 v{ZQ + 8 + e}, 16, v{KV + e}")
a(f"""
s_waitcnt vmcnt(0)
s_mov_b64 exec, 1
s_cmp_lg_u32 s59, 0
s_cbranch_scc1 L_A_slowf2
buffer_store_dword v13, v4, s[28:31], s46 offen
L_A_f2:
s_mov_b64 exec, -1
buffer_load_dword v6, v5, s[28:31], s46 offen sc1
""")
stamp()
for i in range(16):
    a(f"v_mul_f32 v{ZQ + i}, v{ZQ + i}, v{DF + (i & 7)}")
for i in range(16):
    a(f"v_mul_f32 v{ZQ + i}, v{ZQ + i}, v{QF + i}")
a(f"""
v_and_b32 v7, 0x3ff, v3
v_lshlrev_b32 v3, 1, v3
v_sub_u32 v3, v3, v7
s_waitcnt vmcnt(0)
v_cmp_ne_u32 vcc, v13, v6
s_cbranch_vccnz L_A_poll2
L_A_go2:
buffer_load_dwordx4 v12, s[28:31], s48 offen sc1 lds
s_add_u32 s57, s57, 1040
s_mov_b32 m0, s57
v_add_u32 v10, {T_B}, v10
buffer_load_dwordx4 v12, s[28:31], s49 offen sc1 lds
""")
stamp()
a("""
s_waitcnt vmcnt(0)
s_barrier
""")
stamp()
YD, YF, O = 16, 24, 40
for e in range(0, 8, 2):
    a(f"ds_read2_b32 {vr(YD + e, 2)}, v10 offset0:{32 * e} offset1:{32 * e + 32}")
for e in range(0, 8, 2):
    a(f"s_waitcnt lgkmcnt({3 - e // 2})")
    for ee in (e, e + 1):
        a(f"v_lshlrev_b32 v{YF + ee}, 16, v{YD + ee}")
        a(f"v_and_b32 v{YF + 8 + ee}, 0xffff0000, v{YD + ee}")
        a(f"v_fmac_f32 v{ZQ + ee}, v{QF + ee}, v{YF + ee}")
        a(f"v_fmac_f32 v{ZQ + 8 + ee}, v{QF + 8 + ee}, v{YF + 8 + ee}")
    a(f"v_cvt_pk_bf16_f32 v{O + e // 2}, v{ZQ + e}, v{ZQ + e + 1}")
    a(f"v_cvt_pk_bf16_f32 v{O + 4 + e // 2}, v{ZQ + 8 + e}, v{ZQ + 8 + e + 1}")
a(f"""
global_store_dwordx4 v3, {vr(O,4)}, s[20:21]
global_store_dwordx4 v3, {vr(O+4,4)}, s[20:21] offset:2048
s_or_b32 s56, s35, s36
s_cmp_eq_u32 s56, 0
s_cbranch_scc0 L_A_end
v_mov_b32 v4, s41
v_mov_b32 v5, s40
s_mov_b64 exec, 1
buffer_store_dword v4, v5, s[28:31], 0 offen
s_mov_b64 exec, -1
L_A_end:
""")
if STAMPS:
    stamp(); a("s_waitcnt vmcnt(0)"); stamp(); stamps_out()
probe_end()
a("s_endpgm")

a(f"""
L_A_poll1:
s_mov_b32 s60, 0
L_A_poll1a:
buffer_load_dword v6, v5, s[28:31], s46 offen sc1
s_add_u32 s60, s60, 1
s_waitcnt vmcnt(0)
v_cmp_ne_u32 vcc, s52, v6
s_cbranch_vccz L_A_go1
s_and_b32 s61, s60, 15
s_cbranch_scc1 L_A_poll1a
s_add_u32 s61, s38, {WS_F + F_HELLO}
v_mov_b32 v9, s53
s_mov_b64 exec, 1
buffer_store_dword v13, v9, s[28:31], s61 offen sc1
s_mov_b64 exec, -1
v_and_b32 v9, 31, v14
v_lshlrev_b32 v9, 2, v9
buffer_load_dword v6, v9, s[28:31], s61 offen sc1
s_waitcnt vmcnt(0)
v_cmp_ne_u32 vcc, s52, v6
v_subrev_u32 v6, s41, v6
v_cmp_gt_u32 s[32:33], 16, v6
s_and_b64 vcc, vcc, s[32:33]
s_cbranch_vccnz L_A_slow1
s_cmp_lt_u32 s60, {SPIN_MAX}
s_cbranch_scc1 L_A_poll1a
s_branch L_A_go1
L_A_slow1:
s_mov_b32 s59, 1
{"s_sleep 127" + chr(10) + "s_sleep 127" + chr(10) + "s_sleep 127" + chr(10) + "s_sleep 127" + chr(10) + "s_sleep 127" if SLOWPAD else ""}
s_add_u32 s48, s48, {WS_U2}
s_add_u32 s49, s49, {WS_U2}
buffer_store_dwordx4 {vr(UB0,4)}, v12, s[28:31], s48 offen sc1
buffer_store_dwordx4 {vr(UB0+4,4)}, v12, s[28:31], s49 offen sc1
s_add_u32 s48, s48, {WS_Y2 - WS_U2}
s_add_u32 s49, s49, {WS_Y2 - WS_U2}
s_add_u32 s58, s42, {WS_U2}
s_add_u32 s42, s42, {WS_Y2}
s_add_u32 s46, s46, {F_SLOW}
v_mov_b32 v13, s41
s_waitcnt vmcnt(0)
s_mov_b64 exec, 1
buffer_store_dword v13, v4, s[28:31], s46 offen sc1
s_mov_b64 exec, -1
s_mov_b32 s60, 0
L_A_poll1s:
buffer_load_dword v6, v5, s[28:31], s46 offen sc1
s_add_u32 s60, s60, 1
s_waitcnt vmcnt(0)
v_cmp_ne_u32 vcc, s41, v6
s_cbranch_vccz L_A_go1
s_cmp_lt_u32 s60, {SPIN_MAX}
s_cbranch_scc1 L_A_poll1s
s_branch L_A_go1
L_A_slow2:
buffer_store_dwordx4 {vr(Y,4)}, v4, s[28:31], s56 offen sc1
buffer_store_dwordx4 {vr(Y+4,4)}, v4, s[28:31], s56 offen offset:2048 sc1
s_branch L_A_st2
L_A_slowf2:
buffer_store_dword v13, v4, s[28:31], s46 offen sc1
s_branch L_A_f2
L_A_poll2:
s_mov_b32 s60, 0
L_A_poll2a:
buffer_load_dword v6, v5, s[28:31], s46 offen sc1
s_add_u32 s60, s60, 1
s_waitcnt vmcnt(0)
v_cmp_ne_u32 vcc, v13, v6
s_cbranch_vccz L_A_go2
s_cmp_lt_u32 s60, {SPIN_MAX}
s_cbranch_scc1 L_A_poll2a
s_branch L_A_go2
""")

nstamp[0] = 1; role[0] = "B"
F1, XF, G0, GP = 16, 48, 80, 96
a(f"""
L_B:
s_and_b32 s37, s35, 1
s_lshl_b32 s38, s34, 1
s_add_u32 s37, s37, s38                  ; db
s_lshr_b32 s38, s35, 1                   ; s2
s_lshl_b32 s39, s38, 10
s_lshl_b32 s40, s37, 6
s_add_u32 s39, s39, s40
s_lshl_b32 s40, s36, 19
s_add_u32 s39, s39, s40
v_lshrrev_b32 v1, 2, v14
v_and_b32 v2, 3, v14
v_lshlrev_b32 v3, 14, v1
v_lshl_add_u32 v3, v2, 4, v3
v_add_u32 v3, s39, v3
v_add_u32 v4, 0x40000, v3
s_lshl_b32 s40, s36, 11
s_mov_b32 m0, s40
s_add_u32 s40, s40, 1024
s_mov_b32 s42, {WS_F + F_NONCE + 1024}
s_waitcnt lgkmcnt(0)
global_load_lds_dwordx4 v3, s[16:17]
s_mov_b32 m0, s40
s_load_dword s41, s[22:23], s42
global_load_lds_dwordx4 v4, s[16:17]
s_mov_b32 s28, s22
s_mov_b32 s29, s23
s_mov_b32 s24, s20
s_mov_b32 s25, s21
s_mov_b32 s26, 0x400000
v_and_b32 v5, 31, v14
v_lshrrev_b32 v6, 5, v14
v_lshlrev_b32 v7, 16, v6
v_lshl_add_u32 v7, v5, 2, v7
s_lshl_b32 s43, s37, 4
s_add_u32 s43, s43, s38
s_lshl_b32 s44, s43, 7
s_lshl_b32 s45, s36, 19
s_add_u32 s44, s44, s45
s_add_u32 s44, s44, {WS_G}
buffer_load_dword v15, v7, s[28:31], s44 offen sc1
s_lshl_b32 s45, s36, 5
v_add_u32 v8, s45, v5
v_lshrrev_b32 v9, 1, v8                  ; frequency
v_and_b32 v10, 1, v8
v_cmp_eq_u32 vcc, 1, v8
v_cvt_f32_u32 v11, v10
v_mul_f32 v11, 0x3e800000, v11           ; phase
v_and_b32 v12, 1, v9
v_cndmask_b32 v9, v9, 64, vcc
v_cndmask_b32 v11, v11, 0, vcc
v_mul_u32_u24 v12, 0x8000, v12
v_lshl_or_b32 v12, v12, 16, v12
v_cvt_f32_u32 v9, v9
v_mul_f32 v9, 0x3c000000, v9
v_cvt_f32_u32 v6, v6
v_mul_f32 v6, 4.0, v6
v_fmac_f32 v11, v9, v6
""")
stamp()
TMP = XF
for kap in range(4):
    for eps in range(8):
        c = 16 * kap + 8 * (eps >> 2) + (eps & 3)
        a(f"v_fmamk_f32 v{TMP + eps}, v9, {f2u(c)}, v11")
    for eps in range(8): a(f"v_cos_f32 v{TMP + eps}, v{TMP + eps}")
    for i in range(4): a(f"v_cvt_pk_bf16_f32 v{F1 + 4 * kap + i}, v{TMP + 2 * i}, v{TMP + 2 * i + 1}")
    for i in range(4): a(f"v_xor_b32 v{F1 + 16 + 4 * kap + i}, v12, v{F1 + 4 * kap + i}")
a(f"""
v_lshrrev_b32 v5, 5, v14
v_lshlrev_b32 v5, 8, v5
v_and_b32 v6, 3, v1
v_lshl_add_u32 v5, v6, 6, v5
v_bfe_u32 v6, v14, 4, 1
v_lshl_add_u32 v5, v6, 5, v5
v_lshl_add_u32 v5, v2, 3, v5
""")
stamp()
a(f"""
s_waitcnt vmcnt(1) lgkmcnt(0)
s_barrier
""")
stamp()
for i in range(16): a(f"ds_read_b64_tr_b16 {vr(XF + 2 * i, 2)}, v5 offset:{512 * i}")
a(f"s_add_u32 s41, s41, {NONCE_INC}")
for kap in range(8):
    a(f"s_waitcnt lgkmcnt({14 - 2 * kap})")
    a(f"v_mfma_f32_32x32x16_bf16 {vr(G0,16)}, {vr(F1 + 4 * kap, 4)}, {vr(XF + 4 * kap, 4)}, {'0' if kap == 0 else vr(G0,16)}")
a(f"""
s_lshl_b32 s46, s34, 3
s_lshr_b32 s47, s35, 2
s_add_u32 s46, s46, s47                  ; slot
s_and_b32 s47, s35, 1
s_bfe_u32 s48, s35, 0x10001              ; class
s_sub_u32 s49, 128, s46
s_cmp_eq_u32 s46, 0
s_cselect_b32 s49, 64, s49
s_cmp_eq_u32 s48, 0
s_cselect_b32 s49, s46, s49
s_lshl_b32 s47, s47, 10
s_add_u32 s49, s49, s47
v_mov_b32 v13, s41
""")
for j in range(4):
    for rb in range(2):
        a(f"v_cvt_pk_bf16_f32 v{GP + 2 * j + rb}, v{G0 + 4 * j + 2 * rb}, v{G0 + 4 * j + 2 * rb + 1}")
        a(f"buffer_store_dword v{GP + 2 * j + rb}, v7, s[28:31], s44 offen sc1")
        a(f"s_add_u32 s44, s44, {32768 if rb == 0 else 3 * 32768}")
stamp()
FA, FB, FC, TW = 16, 20, 28, 44
TMP = 64
a(f"""
v_and_b32 v1, 15, v14                    ; n / m
v_lshrrev_b32 v2, 4, v14                 ; kg
v_cvt_f32_u32 v3, v2
v_mul_f32 v3, 4.0, v3                    ; 4kg
v_cvt_f32_u32 v4, v1
; stage a: amp[pi] * cos(t*s2/2048 + po/4 + psi[pi])
v_lshrrev_b32 v5, 1, v1
v_lshl_add_u32 v5, v5, 7, s49
v_cvt_f32_u32 v5, v5
v_mul_f32 v5, 0x3a000000, v5             ; t/2048
v_and_b32 v6, 1, v1
v_cvt_f32_u32 v6, v6
v_mul_f32 v6, 0x3e800000, v6
v_fmac_f32 v6, v5, v3
s_cmp_eq_u32 s48, 0
s_cselect_b32 s50, 0xbe800000, 0x3e800000
s_cselect_b32 s51, 0x0000ffff, 0xffff0000
s_cmp_eq_u32 s46, 0
s_cselect_b32 s50, 0, s50
s_cselect_b32 s51, s51, -1
""".replace("s_cselect_b32 s50, 0xbe800000, 0x3e800000", "s_mov_b32 s50, 0x3e800000\ns_cselect_b32 s50, 0xbe800000, s50")
   .replace("s_cselect_b32 s51, 0x0000ffff, 0xffff0000", "s_mov_b32 s51, 0xffff0000\ns_cselect_b32 s51, 0x0000ffff, s51"))
for i in range(4):
    a(f"v_fmamk_f32 v{TMP + 2 * i}, v5, {f2u(i)}, v6")
    a(f"v_add_f32 v{TMP + 2 * i + 1}, s50, v{TMP + 2 * i}")
for i in range(8): a(f"v_cos_f32 v{TMP + i}, v{TMP + i}")
for i in range(4):
    a(f"v_cvt_pk_bf16_f32 v{FA + i}, v{TMP + 2 * i}, v{TMP + 2 * i + 1}")
for i in range(4): a(f"v_and_b32 v{FA + i}, s51, v{FA + i}")
a("v_mul_f32 v5, 0x3d800000, v4\nv_mul_f32 v6, v5, v3")
for i in range(4): a(f"v_fmamk_f32 v{TMP + i}, v5, {f2u(i)}, v6")
for i in range(4):
    a(f"v_sin_f32 v{TMP + 4 + i}, v{TMP + i}")
    a(f"v_cos_f32 v{TMP + i}, v{TMP + i}")
for i in range(4):
    a(f"v_cvt_pk_bf16_f32 v{FB + i}, v{TMP + i}, v{TMP + 4 + i}")
    a(f"v_cvt_pk_bf16_f32 v{FB + 4 + i}, -v{TMP + 4 + i}, v{TMP + i}")
a(f"""
s_lshl_b32 s50, s36, 10
s_lshl_b32 s51, s43, 2
s_add_u32 s50, s50, s51
v_mov_b32 v8, s50
s_lshr_b32 s50, s46, 4
s_lshl_b32 s50, s50, 10
s_lshl_b32 s51, s36, 8
s_add_u32 s50, s50, s51
v_lshl_add_u32 v9, v14, 2, s50
s_mov_b32 s52, {WS_F + F_B}
""")
a("v_mul_f32 v5, 0x3b000000, v4\nv_mul_f32 v6, v5, v3")
for mt in range(2):
    for r in range(4): a(f"v_fmamk_f32 v{TW + 4 * mt + r}, v5, {f2u(16 * mt + r)}, v6")
for i in range(8):
    a(f"v_sin_f32 v{TW + 8 + i}, v{TW + i}")
    a(f"v_cos_f32 v{TW + i}, v{TW + i}")
a(f"""
s_waitcnt vmcnt(0)
s_mov_b64 exec, 1
buffer_store_dword v13, v8, s[28:31], s52 offen sc1
s_mov_b64 exec, -1
buffer_load_dword v10, v9, s[28:31], s52 offen sc1
""")
stamp()
for nt in range(2):
    a(f"v_fmaak_f32 v5, v4, v{TMP + 8}, {f2u(0.5 * nt)}".replace(f"v{TMP + 8}", "v11") if False else
      (f"v_mul_f32 v5, 0x3d000000, v4" if nt == 0 else "v_add_f32 v5, 0.5, v5"))
    a("v_mul_f32 v6, v5, v3")
    for mt in range(2):
        for r in range(4): a(f"v_fmamk_f32 v{TMP + r}, v5, {f2u(16 * mt + r)}, v6")
        for r in range(4):
            a(f"v_sin_f32 v{TMP + 4 + r}, v{TMP + r}")
            a(f"v_cos_f32 v{TMP + r}, v{TMP + r}")
        for r in range(4): a(f"v_cvt_pk_bf16_f32 v{FC + 8 * nt + 4 * mt + r}, v{TMP + r}, v{TMP + 4 + r}")
GL, VA = 64, 96
a(f"""
v_and_b32 v3, 7, v1
v_lshrrev_b32 v4, 3, v1
v_lshlrev_b32 v5, 4, v3
v_lshl_add_u32 v5, v2, 9, v5
v_lshl_add_u32 v5, v4, 12, v5
s_lshl_b32 s50, s46, 15
s_lshl_b32 s51, s36, 13
s_add_u32 s50, s50, s51
s_add_u32 s50, s50, {WS_G}
v_xor_b32 v6, s36, v3
v_lshlrev_b32 v6, 4, v6
v_lshl_add_u32 v6, v3, 8, v6
v_lshl_add_u32 v6, v4, 3, v6
v_lshl_add_u32 v6, v2, 12, v6
v_xor_b32 v7, 64, v6
v_lshrrev_b32 v3, 2, v1
v_xor_b32 v3, v3, v2
v_lshlrev_b32 v3, 4, v3
v_lshl_add_u32 v3, v1, 6, v3
s_lshl_b32 s51, s36, 12
v_add_u32 v3, s51, v3
v_xor_b32 v4, 64, v3
v_and_b32 v11, 1, v2
v_lshlrev_b32 v11, 9, v11
v_lshl_add_u32 v11, v1, 5, v11
v_lshrrev_b32 v12, 1, v2
v_lshl_add_u32 v11, v12, 4, v11
s_lshl_b32 s53, s36, 8
s_add_u32 s53, s53, s49
s_lshl_b32 s53, s53, 11
s_add_u32 s54, s53, 0x40000
s_waitcnt vmcnt(0)
v_cmp_ne_u32 vcc, s41, v10
s_cbranch_vccnz L_B_poll
L_B_go:
""")
for g in range(2):
    for i in range(4):
        a(f"buffer_load_dwordx4 {vr(GL + 16 * g + 4 * i, 4)}, v5, s[28:31], s50 offen offset:{2048 * g + 128 * i} sc1")
stamp()
for g in range(2):
    a(f"s_waitcnt vmcnt({4 - 4 * g})")
    b = GL + 16 * g
    for i in range(4):
        for e in range(i + 1, 4): a(f"v_swap_b32 v{b + 4 * i + e}, v{b + 4 * e + i}")
    for e in range(4):
        a(f"v_mfma_f32_16x16x32_bf16 {vr(VA + 16 * g + 4 * e, 4)}, {vr(FA,4)}, {vr(b + 4 * e, 4)}, 0")
stamp()
VP = 64
for e in range(4):
    for rb in range(2):
        for g in range(2):
            s = VA + 16 * g + 4 * e + 2 * rb
            a(f"v_cvt_pk_bf16_f32 v{VP + 4 * e + 2 * rb + g}, v{s}, v{s + 1}")
        a(f"ds_write_b64 v{7 if e & 1 else 6}, {vr(VP + 4 * e + 2 * rb, 2)} offset:{V_B + 2048 * rb + 128 * (e >> 1)}")
a("s_waitcnt lgkmcnt(0)\ns_barrier")
stamp()
VR, W = 64, 96
for z in range(2):
    for mt in range(2):
        a(f"ds_read_b128 {vr(VR + 8 * z + 4 * mt, 4)}, v{4 if mt else 3} offset:{V_B + 2048 * z + 1024 * mt}")
for z in range(2):
    for mt in range(2):
        a(f"s_waitcnt lgkmcnt({3 - 2 * z - mt})")
        for po in range(2):
            a(f"v_mfma_f32_16x16x32_bf16 {vr(W + 16 * z + 8 * mt + 4 * po, 4)}, {vr(VR + 8 * z + 4 * mt, 4)}, {vr(FB + 4 * po, 4)}, 0")
U, UT, YA, YP = 64, 80, 128, 144
for z in range(2):
    for mt in range(2):
        wr = W + 16 * z + 8 * mt; wi = wr + 4; c = TW + 4 * mt; s = TW + 8 + 4 * mt
        for r in range(4): a(f"v_mul_f32 v{UT + r}, v{c + r}, v{wr + r}")
        for r in range(4): a(f"v_mul_f32 v{UT + 4 + r}, v{c + r}, v{wi + r}")
        for r in range(4): a(f"v_fmac_f32 v{UT + r}, v{s + r}, v{wi + r}")
        for r in range(4): a(f"v_fma_f32 v{UT + 4 + r}, -v{s + r}, v{wr + r}, v{UT + 4 + r}")
        for r in range(4): a(f"v_cvt_pk_bf16_f32 v{U + 8 * z + 4 * mt + r}, v{UT + r}, v{UT + 4 + r}")
        for nt in range(2):
            d = vr(YA + 8 * z + 4 * nt, 4)
            a(f"v_mfma_f32_16x16x32_bf16 {d}, {vr(U + 8 * z + 4 * mt, 4)}, {vr(FC + 8 * nt + 4 * mt, 4)}, {'0' if mt == 0 else d}")
for z in range(2):
    for nt in range(2):
        for j in range(2):
            s = YA + 8 * z + 4 * nt + 2 * j
            a(f"v_cvt_pk_bf16_f32 v{YP + 4 * z + 2 * nt + j}, v{s}, v{s + 1}")
    a(f"v_permlane16_swap_b32 v{YP + 4 * z}, v{YP + 4 * z + 2}")
    a(f"v_permlane16_swap_b32 v{YP + 4 * z + 1}, v{YP + 4 * z + 3}")
    a(f"buffer_store_dwordx4 {vr(YP + 4 * z, 4)}, v11, s[24:27], s{53 + z} offen offset:1024")
a(f"""
s_sub_u32 s56, s2, 256
s_or_b32 s56, s56, s36
s_cbranch_scc1 L_B_end
v_mov_b32 v5, s42
s_mov_b64 exec, 1
buffer_store_dword v13, v5, s[28:31], 0 offen
s_mov_b64 exec, -1
L_B_end:
""")
if STAMPS:
    stamp(); a("s_waitcnt vmcnt(0)"); stamp(); stamps_out()
probe_end()
a(f"""
L_end:
s_endpgm
L_B_poll:
s_mov_b32 s60, 0
L_B_polla:
buffer_load_dword v10, v9, s[28:31], s52 offen sc1
s_add_u32 s60, s60, 1
s_waitcnt vmcnt(0)
v_cmp_ne_u32 vcc, s41, v10
s_cbranch_vccz L_B_go
s_cmp_lt_u32 s60, {SPIN_MAX}
s_cbranch_scc1 L_B_polla
s_branch L_B_go
""")

body = a.finish()
ref = open(f"cdna_kernels/{NAME}.s.ref").read().split("\n")
hdr = [l for l in ref if l.startswith(";") and "@launch" not in l]
out = "\n".join(hdr) + f"""
; @launch grid=(512,1,1) block=(256,1,1) lds={LDS_BYTES}
.amdgcn_target "amdgcn-amd-amdhsa--gfx950"
.text
.globl {NAME}_kernel
.p2align 8
.type {NAME}_kernel,@function
""" + body + f""".p2align 8
.fill 4096, 4, 0xbf810000
.section .rodata,"a"
.p2align 6
.amdhsa_kernel {NAME}_kernel
  .amdhsa_next_free_vgpr 256
  .amdhsa_next_free_sgpr 102
  .amdhsa_accum_offset 256
  .amdhsa_group_segment_fixed_size 0
  .amdhsa_kernarg_size 112
  .amdhsa_user_sgpr_count 2
  .amdhsa_user_sgpr_kernarg_segment_ptr 1
  .amdhsa_system_sgpr_workgroup_id_x 1
.end_amdhsa_kernel
"""
dst = [x for x in sys.argv[1:] if not x.startswith("--")]
open(dst[0] if dst else f"cdna_kernels/{NAME}.s", "w").write(out)
print("nops inserted:", a.nops, file=sys.stderr)
```

```python
import sys, struct
from asmlib import Asm
NAME = "concat_heads__ssm_conv_h3__spectral_fnet__prompt"
STAMPS = "--stamps" in sys.argv
FORCE_SLOW = "--slow" in sys.argv
PROBE = [x[8:] for x in sys.argv if x.startswith("--probe=")]
PROBE = PROBE[0].split(",") if PROBE else None
SLOWPAD = "--slowpad" in sys.argv
OUTF = [x[7:] for x in sys.argv if x.startswith("--outf=")]
OUTF = " " + OUTF[0].replace("+", " ") if OUTF else ""
WSOFF = [int(x[8:], 0) for x in sys.argv if x.startswith("--wsoff=")]
WSOFF = WSOFF[0] if WSOFF else 0
role = ["A"]

WS_U, WS_G, WS_F, WS_U2, WS_Y2, WS_ST, WS_SIZE = 0x0, 0x200000, 0x400000, 0x600000, 0x800000, 0xA00000, 0xC00000
F_1, F_2, F_HELLO, F_SLOW, F_NONCE, F_B = 0, 4096, 8192, 16384, 32768, 40960
NONCE_INC = 0x9E3779B0
E_CH, E_B0 = 16512, 128
U_B = 34048
T_B = 42240
R_B = 50560
LDS_BYTES = 66944
X_B, V_B = 0, 8192
SPIN_MAX = 1 << 18

def f2u(x): return "0x%08x" % struct.unpack("<I", struct.pack("<f", x))[0]
def vr(a, n=1): return "v%d" % a if n == 1 else "v[%d:%d]" % (a, a + n - 1)

a = Asm()
nstamp = [0]
def probe_end():
    if not PROBE: return
    lab = "L_probe_" + role[0]
    a("s_waitcnt vmcnt(0) lgkmcnt(0)")
    if PROBE[1] == "end" and PROBE[0] == role[0]:
        a("s_memrealtime s[66:67]\ns_waitcnt lgkmcnt(0)")
    if PROBE[0] == role[0]:
        a("s_sub_u32 s66, s66, s62\ns_lshl_b32 s66, s66, 2\ns_add_u32 s66, s66, 3000")
    else:
        a("s_mov_b32 s66, 3000")
    a(f"""{lab}:
s_sleep 4
s_memrealtime s[68:69]
s_waitcnt lgkmcnt(0)
s_sub_u32 s68, s68, s62
s_cmp_lt_u32 s68, s66
s_cbranch_scc1 {lab}""")
def stamp():
    if PROBE:
        i = nstamp[0]; nstamp[0] += 1
        if PROBE[0] == role[0] and PROBE[1] == str(i): a("s_memrealtime s[66:67]")
    if STAMPS:
        i = nstamp[0]; nstamp[0] += 1
        a(f"s_memtime s[{64 + 2 * i}:{65 + 2 * i}]")
def stamps_out():
    if not STAMPS: return
    n = nstamp[0]
    a("s_waitcnt lgkmcnt(0)")
    a("v_mov_b32 v1, 0")
    a("v_writelane_b32 v1, s62, 0")
    for i in range(n):
        a(f"s_sub_u32 s60, s{64 + 2 * i}, s64")
        a(f"v_writelane_b32 v1, s60, {i + 1}")
    a(f"""
s_lshl_b32 s60, s2, 10
s_add_u32 s60, s60, {WS_ST}
v_lshlrev_b32 v2, 2, v0
buffer_store_dword v1, v2, s[28:31], s60 offen
""")

a(f"""
{NAME}_kernel:
s_cmp_ge_u32 s2, 512
s_cbranch_scc1 L_end
s_load_dwordx16 s[4:19], s[0:1], 0
s_load_dwordx2 s[20:21], s[0:1], 88
s_load_dwordx2 s[22:23], s[0:1], 104
""")
if STAMPS or PROBE: a("s_memrealtime s[62:63]")
stamp()
a(f"""
s_getpc_b64 s[32:33]
s_and_b32 s34, s2, 7
s_bfe_u32 s35, s2, 0x50003
v_lshrrev_b32 v1, 6, v0
s_lshl_b32 s37, s35, 9
v_lshl_add_u32 v2, v1, 7, s37
v_readfirstlane_b32 s36, v1
global_load_dword v15, v2, s[32:33]
s_mov_b32 s27, 0x20000
s_mov_b32 s30, {WS_SIZE}
s_mov_b32 s31, 0x20000
v_and_b32 v14, 63, v0                    ; lane
s_cmp_ge_u32 s2, 256
s_cbranch_scc1 L_B
""")

K, VV, WT, H, DD, Q, KV, ACC, AF = 16, 36, 44, 60, 76, 80, 88, 96, 128
a(f"""
s_setprio 1
v_lshrrev_b32 v1, 3, v0                  ; tp
v_and_b32 v2, 7, v0                      ; q
s_lshl_b32 s37, s35, 16
s_lshl_b32 s38, s34, 7
s_add_u32 s37, s37, s38
v_lshlrev_b32 v3, 11, v1
v_lshl_add_u32 v3, v2, 4, v3
v_add_u32 v3, s37, v3
v_add_u32 v4, 0xfffff400, v3
v_add_u32 v5, 0xfffff800, v3
v_add_u32 v6, 0xfffffc00, v3
s_lshl_b32 s39, s34, 9
v_lshl_add_u32 v7, v2, 6, s39
s_mov_b32 s26, 0x200000
s_add_u32 s40, s38, {WS_F + F_NONCE}
s_waitcnt lgkmcnt(0)
{"s_add_u32 s22, s22, %d" % WSOFF + chr(10) + "s_addc_u32 s23, s23, 0" if WSOFF else ""}
s_mov_b32 s24, s6
s_mov_b32 s25, s7
s_load_dword s41, s[22:23], s40
buffer_load_dwordx4 {vr(K,4)}, v4, s[24:27], 0 offen
buffer_load_dwordx4 {vr(K+4,4)}, v5, s[24:27], 0 offen
buffer_load_dwordx4 {vr(K+8,4)}, v6, s[24:27], 0 offen
buffer_load_dwordx4 {vr(K+12,4)}, v3, s[24:27], 0 offen
buffer_load_dwordx4 {vr(K+16,4)}, v3, s[24:27], 0 offen offset:1024
global_load_dwordx4 {vr(WT,4)}, v7, s[10:11]
global_load_dwordx4 {vr(WT+4,4)}, v7, s[10:11] offset:16
global_load_dwordx4 {vr(WT+8,4)}, v7, s[10:11] offset:32
global_load_dwordx4 {vr(WT+12,4)}, v7, s[10:11] offset:48
global_load_dwordx4 {vr(VV,4)}, v3, s[8:9]
global_load_dwordx4 {vr(VV+4,4)}, v3, s[8:9] offset:1024
s_mov_b32 s28, s22
s_mov_b32 s29, s23
; --- h loads
s_lshl_b32 s42, s34, 18
s_lshl_b32 s43, s35, 13
s_add_u32 s42, s42, s43
v_lshrrev_b32 v4, 7, v0                  ; ch
v_and_b32 v5, 127, v0                    ; T'
v_lshlrev_b32 v6, 12, v4
v_lshl_add_u32 v6, v5, 3, v6
v_add_u32 v6, s42, v6
v_cmp_eq_u32 s[44:45], 0, v5
v_add_u32 v7, 8, v6
v_cndmask_b32 v7, v6, v7, s[44:45]
global_load_dwordx4 {vr(H,4)}, v7, s[12:13] offset:-8
global_load_dwordx4 {vr(H+4,4)}, v6, s[12:13] offset:1016
global_load_dwordx4 {vr(H+8,4)}, v6, s[12:13] offset:2040
global_load_dwordx4 {vr(H+12,4)}, v6, s[12:13] offset:3064
; --- make the own box and the flag lines resident in L2 (values are not used)
v_lshlrev_b32 v7, 5, v0
buffer_load_dword v15, v7, s[28:31], s42 offen sc1
s_add_u32 s46, s39, {WS_F}
v_lshrrev_b32 v7, 5, v14
v_lshlrev_b32 v7, 12, v7
s_lshl_b32 s47, s36, 7
v_add_u32 v7, s47, v7
buffer_load_dword v15, v7, s[28:31], s46 offen sc1
v_lshl_add_u32 v7, v2, 4, s38
global_load_dwordx4 {vr(DD,4)}, v7, s[14:15]
; --- table write address, zero pads
v_mul_u32_u24 v4, {E_CH}, v4
v_lshl_add_u32 v8, v5, 5, v4
v_and_b32 v5, 31, v0
v_lshl_add_u32 v4, v5, 2, v4
v_mov_b32 v6, 0
ds_write_b32 v4, v6
v_lshlrev_b32 v4, 2, v0
ds_write_b32 v4, v6 offset:{U_B - 1024}
; --- transposition image addresses
v_mul_u32_u24 v9, 1040, v2
v_lshl_add_u32 v10, v1, 2, v9
v_xor_b32 v4, 3, v1
v_lshl_add_u32 v9, v4, 2, v9
s_and_b32 s48, s35, 3
v_xor_b32 v4, s48, v14
v_and_b32 v5, 1, v4
v_lshlrev_b32 v5, 7, v5                  ; ch*128
v_and_b32 v4, 2, v4
v_lshl_add_u32 v5, v4, 3, v5             ; + parity*16
v_and_b32 v4, 12, v14
v_lshl_add_u32 v5, v4, 3, v5             ; + xl*32
v_lshrrev_b32 v4, 4, v14
v_lshl_add_u32 v5, v4, 8, v5             ; + (L>>4)*256
s_mul_i32 s48, s36, 2080
v_add_u32 v11, s48, v5                   ; v11 = image re-read address (z=1: +1040)
v_and_b32 v5, 15, v14
v_lshlrev_b32 v5, 4, v5
v_lshl_add_u32 v12, v4, 13, v5           ; v12 = (L>>4)*8192 + 16*(L&15)
s_lshl_b32 s48, s34, 18
s_lshl_b32 s49, s36, 16
s_add_u32 s48, s48, s49
s_lshl_b32 s49, s35, 8
s_add_u32 s48, s48, s49
s_add_u32 s49, s48, 32768
s_mov_b32 s50, 0x05040100
s_mov_b32 s51, 0x07060302
s_getreg_b32 s52, hwreg(HW_REG_XCC_ID, 0, 4)
""")
if FORCE_SLOW: a("s_and_b32 s52, s35, 1")
stamp()
P = ACC
a("s_waitcnt vmcnt(13)")
stamp()
for p in range(4):
    for e in range(8):
        a(f"v_perm_b32 v{P + 8 * p + e}, v{K + 4 * p + e // 2}, v{K + 4 * (p + 1) + e // 2}, s{50 + (e & 1)}")
a(f"""
s_waitcnt lgkmcnt(0)
s_add_u32 s41, s41, {NONCE_INC}
s_add_u32 s52, s52, s41
s_waitcnt vmcnt(9)
""")
KS = AF
for e in range(8):
    a(f"v_dot2_f32_bf16 v{KS + e}, v{P + 16 + e}, v{WT + 2 * e}, 0")
    a(f"v_dot2_f32_bf16 v{KS + 8 + e}, v{P + 24 + e}, v{WT + 2 * e}, 0")
for e in range(8):
    a(f"v_dot2_f32_bf16 v{KS + e}, v{P + e}, v{WT + 2 * e + 1}, v{KS + e}")
    a(f"v_dot2_f32_bf16 v{KS + 8 + e}, v{P + 8 + e}, v{WT + 2 * e + 1}, v{KS + 8 + e}")
a("s_waitcnt vmcnt(7)")
stamp()
VF = AF + 16
for row in range(2):
    for e in range(8):
        src = VV + 4 * row + e // 2
        a(f"v_and_b32 v{VF + 8 * row + e}, 0xffff0000, v{src}" if e & 1 else f"v_lshlrev_b32 v{VF + 8 * row + e}, 16, v{src}")
for e in range(8):
    a(f"v_mul_f32 v{KS + e}, v{KS + e}, v{VF + e}")
    a(f"v_mul_f32 v{KS + 8 + e}, v{KS + 8 + e}, v{VF + 8 + e}")
    a(f"v_cvt_pk_bf16_f32 v{KV + e}, v{KS + 8 + e}, v{KS + e}")
a(f"v_add_u32 v9, {T_B}, v9")
for e in range(0, 8, 2):
    a(f"ds_write2_b32 v9, v{KV + e}, v{KV + e + 1} offset0:{32 * e} offset1:{32 * e + 32}")
UB0 = VV
a(f"""
v_mov_b32 v13, s52
s_lshl_b32 s53, s35, 2
s_waitcnt lgkmcnt(0)
s_barrier
ds_read_b128 {vr(UB0,4)}, v11 offset:{T_B}
ds_read_b128 {vr(UB0+4,4)}, v11 offset:{T_B + 1040}
s_add_u32 s54, s53, s47
v_mov_b32 v4, s54
s_lshr_b32 s54, s35, 3
s_lshl_b32 s54, s54, 7
v_and_b32 v5, 31, v14
v_lshl_add_u32 v5, v5, 2, s54
s_waitcnt lgkmcnt(1)
buffer_store_dwordx4 {vr(UB0,4)}, v12, s[28:31], s48 offen
s_waitcnt lgkmcnt(0)
buffer_store_dwordx4 {vr(UB0+4,4)}, v12, s[28:31], s49 offen
""")
stamp()
a("s_waitcnt vmcnt(5)")
stamp()
T = K
a(f"""
v_cndmask_b32 v{H+3}, v{H+3}, v{H+1}, s[44:45]
v_cndmask_b32 v{H+2}, v{H+2}, v{H}, s[44:45]
v_cndmask_b32 v{H+1}, v{H+1}, v6, s[44:45]
v_cndmask_b32 v{H}, v{H}, v6, s[44:45]
""")
for nu in range(4):
    L = H + 4 * nu; t = T + 4 * nu
    a(f"""
v_alignbit_b32 v{t}, v{L+1}, v{L}, 16
v_alignbit_b32 v{t+1}, v{L+2}, v{L+1}, 16
v_mov_b32 v{t+2}, v{L+1}
v_mov_b32 v{t+3}, v{L+2}
v_mov_b32 v{L}, v{t+1}
v_alignbit_b32 v{L+1}, v{L+3}, v{L+2}, 16
ds_write_b128 v8, {vr(t,4)} offset:{E_B0 + 4096 * nu}
ds_write_b128 v8, {vr(L,4)} offset:{E_B0 + 4096 * nu + 16}
""")
a(f"""
s_waitcnt vmcnt(0)
s_mov_b64 exec, 1
buffer_store_dword v13, v4, s[28:31], s46 offen
s_mov_b64 exec, -1
buffer_load_dword v6, v5, s[28:31], s46 offen sc1
""")
stamp()
a(f"""
s_lshr_b32 s54, s36, 1                   ; ch
s_and_b32 s55, s36, 1                    ; hf
s_mul_i32 s56, s54, {E_CH}
s_lshl_b32 s57, s55, 10
s_add_u32 s56, s56, s57
v_lshl_add_u32 v8, v14, 3, s56
v_and_b32 v1, 15, v14
v_lshrrev_b32 v2, 4, v14
v_sub_u32 v7, v1, v2
s_lshl_b32 s57, s55, 3
s_sub_u32 s57, 16, s57
v_add_u32 v7, s57, v7                    ; x+16 for a=0
s_add_u32 s57, s54, 2
v_bfe_u32 v9, v7, 2, 2
v_xor_b32 v9, s57, v9
v_lshlrev_b32 v9, 4, v9
v_lshl_add_u32 v{WT}, v7, 6, v9
v_xor_b32 v{WT+1}, 32, v{WT}
v_add_u32 v7, -4, v7
v_bfe_u32 v9, v7, 2, 2
v_xor_b32 v9, s57, v9
v_lshlrev_b32 v9, 4, v9
v_lshl_add_u32 v{WT+2}, v7, 6, v9
v_xor_b32 v{WT+3}, 32, v{WT+2}
s_lshl_b32 s57, s36, 11
v_lshl_add_u32 v7, v14, 4, s57           ; v7 = w*2048 + 16*l
s_add_u32 s57, s57, {U_B}
s_mov_b32 m0, s57
s_mov_b32 s58, s42
s_mov_b32 s59, 0
s_waitcnt lgkmcnt(0)
s_barrier
""")
def afrag(kp, j): return AF + 32 * kp + 4 * j
def aread(kp):
    for j in range(8):
        off = E_B0 - 96 + 2048 * j + 512 * (kp >> 1) + 64 * (kp & 1)
        a(f"ds_read_b64 {vr(afrag(kp, j), 2)}, v8 offset:{off}")
        a(f"ds_read_b64 {vr(afrag(kp, j) + 2, 2)}, v8 offset:{off + 32}")
aread(0)
a(f"""
s_waitcnt vmcnt(0)
v_cmp_ne_u32 vcc, s52, v6
s_cbranch_vccnz L_A_poll1
L_A_go1:
buffer_load_dwordx4 v7, s[28:31], s58 offen sc1 lds
buffer_load_dwordx4 v7, s[28:31], s58 offen offset:1024 sc1 lds
global_load_dwordx4 {vr(Q,4)}, v3, s[4:5]
global_load_dwordx4 {vr(Q+4,4)}, v3, s[4:5] offset:1024
""")
stamp()
aread(1); aread(2); aread(3)
a("""
s_waitcnt vmcnt(2)
s_barrier
""")
stamp()
NB = 7
BR = [16, 20, 24, 28, 32, 36, 40]
seq = [(kp, m) for kp in range(4) for m in range(8)]
def bread(i):
    kp, m = seq[i]
    a(f"ds_read_b128 {vr(BR[i % NB], 4)}, v{WT + kp} offset:{U_B - 1024 + 1024 * m}")
PF = 5
for i in range(PF): bread(i)
for i, (kp, m) in enumerate(seq):
    a(f"s_waitcnt lgkmcnt({min(PF - 1, len(seq) - 1 - i)})")
    for j in range(8 - m):
        c = m + j
        srcc = "0" if i == 0 else vr(ACC + 4 * c, 4)
        a(f"v_mfma_f32_16x16x32_bf16 {vr(ACC + 4 * c, 4)}, {vr(afrag(kp, j), 4)}, {vr(BR[i % NB], 4)}, {srcc}")
        if j == 0 and i + PF < len(seq): bread(i + PF)
stamp()
Y = 16; RD = 32
a(f"""
s_lshl_b32 s57, s36, 12
v_lshl_add_u32 v9, v14, 4, s57
v_xor_b32 v11, 0x1000, v9
v_and_b32 v4, 3, v1
v_lshlrev_b32 v4, 5, v4
v_lshrrev_b32 v5, 2, v1
v_lshl_add_u32 v4, v5, 8, v4
v_and_b32 v5, 1, v2
v_lshl_add_u32 v4, v5, 10, v4
v_lshrrev_b32 v5, 1, v2
v_lshl_add_u32 v4, v5, 4, v4
s_cmp_eq_u32 s55, 0
s_cbranch_scc0 L_A_red1
""")
def red(send, keep):
    for z in range(4): a(f"ds_write_b128 v9, {vr(ACC + 4 * (send + z), 4)} offset:{R_B + 1024 * z}")
    a("s_waitcnt lgkmcnt(0)\ns_barrier")
    for z in range(4): a(f"ds_read_b128 {vr(RD + 4 * z, 4)}, v11 offset:{R_B + 1024 * z}")
    for z in range(4):
        a(f"s_waitcnt lgkmcnt({3 - z})")
        for i in range(4): a(f"v_add_f32 v{RD + 4 * z + i}, v{RD + 4 * z + i}, v{ACC + 4 * (keep + z) + i}")
red(4, 0)
a("s_branch L_A_red2\nL_A_red1:")
red(0, 4)
a("L_A_red2:")
for z in range(4):
    a(f"v_cvt_pk_bf16_f32 v{Y + 2 * z}, v{RD + 4 * z}, v{RD + 4 * z + 1}")
    a(f"v_cvt_pk_bf16_f32 v{Y + 2 * z + 1}, v{RD + 4 * z + 2}, v{RD + 4 * z + 3}")
a(f"""
s_lshl_b32 s56, s55, 12
s_lshl_b32 s57, s54, 7
s_add_u32 s56, s56, s57
s_add_u32 s56, s56, s42
v_permlane16_swap_b32 v{Y}, v{Y+2}
v_permlane16_swap_b32 v{Y+1}, v{Y+3}
v_permlane16_swap_b32 v{Y+4}, v{Y+6}
v_permlane16_swap_b32 v{Y+5}, v{Y+7}
s_cmp_lg_u32 s59, 0
s_cbranch_scc1 L_A_slow2
buffer_store_dwordx4 {vr(Y,4)}, v4, s[28:31], s56 offen
buffer_store_dwordx4 {vr(Y+4,4)}, v4, s[28:31], s56 offen offset:2048
L_A_st2:
""")
stamp()
QF, ZQ, DF = AF, AF + 16, AF + 32
a(f"""
s_lshl_b32 s56, s55, 8
s_lshl_b32 s57, s35, 3
s_add_u32 s56, s56, s57
s_lshl_b32 s57, s54, 2
s_add_u32 s56, s56, s57
v_mov_b32 v4, s56
s_lshr_b32 s56, s35, 4
s_lshl_b32 s56, s56, 8
s_lshl_b32 s57, s36, 6
s_add_u32 s56, s56, s57
v_lshl_add_u32 v5, v1, 2, s56
s_add_u32 s46, s46, {F_2}
s_mul_i32 s57, s36, 2080
s_add_u32 s57, s57, {T_B}
s_mov_b32 m0, s57
s_waitcnt vmcnt(2)
""")
for e in range(8):
    src = DD + e // 2
    a(f"v_and_b32 v{DF + e}, 0xffff0000, v{src}" if e & 1 else f"v_lshlrev_b32 v{DF + e}, 16, v{src}")
for row in range(2):
    for e in range(8):
        src = Q + 4 * row + e // 2
        a(f"v_and_b32 v{QF + 8 * row + e}, 0xffff0000, v{src}" if e & 1 else f"v_lshlrev_b32 v{QF + 8 * row + e}, 16, v{src}")
for e in range(8):
    a(f"v_and_b32 v{ZQ + e}, 0xffff0000, v{KV + e}")
    a(f"v_lshlrev_b32 v{ZQ + 8 + e}, 16, v{KV + e}")
a(f"""
s_waitcnt vmcnt(0)
s_mov_b64 exec, 1
s_cmp_lg_u32 s59, 0
s_cbranch_scc1 L_A_slowf2
buffer_store_dword v13, v4, s[28:31], s46 offen
L_A_f2:
s_mov_b64 exec, -1
buffer_load_dword v6, v5, s[28:31], s46 offen sc1
""")
stamp()
for i in range(16):
    a(f"v_mul_f32 v{ZQ + i}, v{ZQ + i}, v{DF + (i & 7)}")
for i in range(16):
    a(f"v_mul_f32 v{ZQ + i}, v{ZQ + i}, v{QF + i}")
a(f"""
v_and_b32 v7, 0x3ff, v3
v_lshlrev_b32 v3, 1, v3
v_sub_u32 v3, v3, v7
s_waitcnt vmcnt(0)
v_cmp_ne_u32 vcc, v13, v6
s_cbranch_vccnz L_A_poll2
L_A_go2:
buffer_load_dwordx4 v12, s[28:31], s48 offen sc1 lds
s_add_u32 s57, s57, 1040
s_mov_b32 m0, s57
v_add_u32 v10, {T_B}, v10
buffer_load_dwordx4 v12, s[28:31], s49 offen sc1 lds
""")
stamp()
a("""
s_waitcnt vmcnt(0)
s_barrier
""")
stamp()
YD, YF, O = 16, 24, 40
for e in range(0, 8, 2):
    a(f"ds_read2_b32 {vr(YD + e, 2)}, v10 offset0:{32 * e} offset1:{32 * e + 32}")
for e in range(0, 8, 2):
    a(f"s_waitcnt lgkmcnt({3 - e // 2})")
    for ee in (e, e + 1):
        a(f"v_lshlrev_b32 v{YF + ee}, 16, v{YD + ee}")
        a(f"v_and_b32 v{YF + 8 + ee}, 0xffff0000, v{YD + ee}")
        a(f"v_fmac_f32 v{ZQ + ee}, v{QF + ee}, v{YF + ee}")
        a(f"v_fmac_f32 v{ZQ + 8 + ee}, v{QF + 8 + ee}, v{YF + 8 + ee}")
    a(f"v_cvt_pk_bf16_f32 v{O + e // 2}, v{ZQ + e}, v{ZQ + e + 1}")
    a(f"v_cvt_pk_bf16_f32 v{O + 4 + e // 2}, v{ZQ + 8 + e}, v{ZQ + 8 + e + 1}")
a(f"""
global_store_dwordx4 v3, {vr(O,4)}, s[20:21]{OUTF}
global_store_dwordx4 v3, {vr(O+4,4)}, s[20:21] offset:2048{OUTF}
s_or_b32 s56, s35, s36
s_cmp_eq_u32 s56, 0
s_cbranch_scc0 L_A_end
v_mov_b32 v4, s41
v_mov_b32 v5, s40
s_mov_b64 exec, 1
buffer_store_dword v4, v5, s[28:31], 0 offen
s_mov_b64 exec, -1
L_A_end:
""")
if STAMPS:
    stamp(); a("s_waitcnt vmcnt(0)"); stamp(); stamps_out()
probe_end()
a("s_endpgm")

a(f"""
L_A_poll1:
s_mov_b32 s60, 0
L_A_poll1a:
buffer_load_dword v6, v5, s[28:31], s46 offen sc1
s_add_u32 s60, s60, 1
s_waitcnt vmcnt(0)
v_cmp_ne_u32 vcc, s52, v6
s_cbranch_vccz L_A_go1
s_and_b32 s61, s60, 15
s_cbranch_scc1 L_A_poll1a
s_add_u32 s61, s38, {WS_F + F_HELLO}
v_mov_b32 v9, s53
s_mov_b64 exec, 1
buffer_store_dword v13, v9, s[28:31], s61 offen sc1
s_mov_b64 exec, -1
v_and_b32 v9, 31, v14
v_lshlrev_b32 v9, 2, v9
buffer_load_dword v6, v9, s[28:31], s61 offen sc1
s_waitcnt vmcnt(0)
v_cmp_ne_u32 vcc, s52, v6
v_subrev_u32 v6, s41, v6
v_cmp_gt_u32 s[32:33], 16, v6
s_and_b64 vcc, vcc, s[32:33]
s_cbranch_vccnz L_A_slow1
s_cmp_lt_u32 s60, {SPIN_MAX}
s_cbranch_scc1 L_A_poll1a
s_branch L_A_go1
L_A_slow1:
s_mov_b32 s59, 1
{"s_sleep 127" + chr(10) + "s_sleep 127" + chr(10) + "s_sleep 127" + chr(10) + "s_sleep 127" + chr(10) + "s_sleep 127" if SLOWPAD else ""}
s_add_u32 s48, s48, {WS_U2}
s_add_u32 s49, s49, {WS_U2}
buffer_store_dwordx4 {vr(UB0,4)}, v12, s[28:31], s48 offen sc1
buffer_store_dwordx4 {vr(UB0+4,4)}, v12, s[28:31], s49 offen sc1
s_add_u32 s48, s48, {WS_Y2 - WS_U2}
s_add_u32 s49, s49, {WS_Y2 - WS_U2}
s_add_u32 s58, s42, {WS_U2}
s_add_u32 s42, s42, {WS_Y2}
s_add_u32 s46, s46, {F_SLOW}
v_mov_b32 v13, s41
s_waitcnt vmcnt(0)
s_mov_b64 exec, 1
buffer_store_dword v13, v4, s[28:31], s46 offen sc1
s_mov_b64 exec, -1
s_mov_b32 s60, 0
L_A_poll1s:
buffer_load_dword v6, v5, s[28:31], s46 offen sc1
s_add_u32 s60, s60, 1
s_waitcnt vmcnt(0)
v_cmp_ne_u32 vcc, s41, v6
s_cbranch_vccz L_A_go1
s_cmp_lt_u32 s60, {SPIN_MAX}
s_cbranch_scc1 L_A_poll1s
s_branch L_A_go1
L_A_slow2:
buffer_store_dwordx4 {vr(Y,4)}, v4, s[28:31], s56 offen sc1
buffer_store_dwordx4 {vr(Y+4,4)}, v4, s[28:31], s56 offen offset:2048 sc1
s_branch L_A_st2
L_A_slowf2:
buffer_store_dword v13, v4, s[28:31], s46 offen sc1
s_branch L_A_f2
L_A_poll2:
s_mov_b32 s60, 0
L_A_poll2a:
buffer_load_dword v6, v5, s[28:31], s46 offen sc1
s_add_u32 s60, s60, 1
s_waitcnt vmcnt(0)
v_cmp_ne_u32 vcc, v13, v6
s_cbranch_vccz L_A_go2
s_cmp_lt_u32 s60, {SPIN_MAX}
s_cbranch_scc1 L_A_poll2a
s_branch L_A_go2
""")

nstamp[0] = 1; role[0] = "B"
F1, XF, G0, GP = 16, 48, 80, 96
a(f"""
L_B:
s_and_b32 s37, s35, 1
s_lshl_b32 s38, s34, 1
s_add_u32 s37, s37, s38                  ; db
s_lshr_b32 s38, s35, 1                   ; s2
s_lshl_b32 s39, s38, 10
s_lshl_b32 s40, s37, 6
s_add_u32 s39, s39, s40
s_lshl_b32 s40, s36, 19
s_add_u32 s39, s39, s40
v_lshrrev_b32 v1, 2, v14
v_and_b32 v2, 3, v14
v_lshlrev_b32 v3, 14, v1
v_lshl_add_u32 v3, v2, 4, v3
v_add_u32 v3, s39, v3
v_add_u32 v4, 0x40000, v3
s_lshl_b32 s40, s36, 11
s_mov_b32 m0, s40
s_add_u32 s40, s40, 1024
s_mov_b32 s42, {WS_F + F_NONCE + 1024}
s_waitcnt lgkmcnt(0)
{"s_add_u32 s22, s22, %d" % WSOFF + chr(10) + "s_addc_u32 s23, s23, 0" if WSOFF else ""}
global_load_lds_dwordx4 v3, s[16:17]
s_mov_b32 m0, s40
s_load_dword s41, s[22:23], s42
global_load_lds_dwordx4 v4, s[16:17]
s_mov_b32 s28, s22
s_mov_b32 s29, s23
s_mov_b32 s24, s20
s_mov_b32 s25, s21
s_mov_b32 s26, 0x400000
v_and_b32 v5, 31, v14
v_lshrrev_b32 v6, 5, v14
v_lshlrev_b32 v7, 16, v6
v_lshl_add_u32 v7, v5, 2, v7
s_lshl_b32 s43, s37, 4
s_add_u32 s43, s43, s38
s_lshl_b32 s44, s43, 7
s_lshl_b32 s45, s36, 19
s_add_u32 s44, s44, s45
s_add_u32 s44, s44, {WS_G}
buffer_load_dword v15, v7, s[28:31], s44 offen sc1
s_lshl_b32 s45, s36, 5
v_add_u32 v8, s45, v5
v_lshrrev_b32 v9, 1, v8                  ; frequency
v_and_b32 v10, 1, v8
v_cmp_eq_u32 vcc, 1, v8
v_cvt_f32_u32 v11, v10
v_mul_f32 v11, 0x3e800000, v11           ; phase
v_and_b32 v12, 1, v9
v_cndmask_b32 v9, v9, 64, vcc
v_cndmask_b32 v11, v11, 0, vcc
v_mul_u32_u24 v12, 0x8000, v12
v_lshl_or_b32 v12, v12, 16, v12
v_cvt_f32_u32 v9, v9
v_mul_f32 v9, 0x3c000000, v9
v_cvt_f32_u32 v6, v6
v_mul_f32 v6, 4.0, v6
v_fmac_f32 v11, v9, v6
""")
stamp()
TMP = XF
for kap in range(4):
    for eps in range(8):
        c = 16 * kap + 8 * (eps >> 2) + (eps & 3)
        a(f"v_fmamk_f32 v{TMP + eps}, v9, {f2u(c)}, v11")
    for eps in range(8): a(f"v_cos_f32 v{TMP + eps}, v{TMP + eps}")
    for i in range(4): a(f"v_cvt_pk_bf16_f32 v{F1 + 4 * kap + i}, v{TMP + 2 * i}, v{TMP + 2 * i + 1}")
    for i in range(4): a(f"v_xor_b32 v{F1 + 16 + 4 * kap + i}, v12, v{F1 + 4 * kap + i}")
a(f"""
v_lshrrev_b32 v5, 5, v14
v_lshlrev_b32 v5, 8, v5
v_and_b32 v6, 3, v1
v_lshl_add_u32 v5, v6, 6, v5
v_bfe_u32 v6, v14, 4, 1
v_lshl_add_u32 v5, v6, 5, v5
v_lshl_add_u32 v5, v2, 3, v5
""")
stamp()
a(f"""
s_waitcnt vmcnt(1) lgkmcnt(0)
s_barrier
""")
stamp()
for i in range(16): a(f"ds_read_b64_tr_b16 {vr(XF + 2 * i, 2)}, v5 offset:{512 * i}")
a(f"s_add_u32 s41, s41, {NONCE_INC}")
for kap in range(8):
    a(f"s_waitcnt lgkmcnt({14 - 2 * kap})")
    a(f"v_mfma_f32_32x32x16_bf16 {vr(G0,16)}, {vr(F1 + 4 * kap, 4)}, {vr(XF + 4 * kap, 4)}, {'0' if kap == 0 else vr(G0,16)}")
a(f"""
s_lshl_b32 s46, s34, 3
s_lshr_b32 s47, s35, 2
s_add_u32 s46, s46, s47                  ; slot
s_and_b32 s47, s35, 1
s_bfe_u32 s48, s35, 0x10001              ; class
s_sub_u32 s49, 128, s46
s_cmp_eq_u32 s46, 0
s_cselect_b32 s49, 64, s49
s_cmp_eq_u32 s48, 0
s_cselect_b32 s49, s46, s49
s_lshl_b32 s47, s47, 10
s_add_u32 s49, s49, s47
v_mov_b32 v13, s41
""")
for j in range(4):
    for rb in range(2):
        a(f"v_cvt_pk_bf16_f32 v{GP + 2 * j + rb}, v{G0 + 4 * j + 2 * rb}, v{G0 + 4 * j + 2 * rb + 1}")
        a(f"buffer_store_dword v{GP + 2 * j + rb}, v7, s[28:31], s44 offen sc1")
        a(f"s_add_u32 s44, s44, {32768 if rb == 0 else 3 * 32768}")
stamp()
FA, FB, FC, TW = 16, 20, 28, 44
TMP = 64
a(f"""
v_and_b32 v1, 15, v14                    ; n / m
v_lshrrev_b32 v2, 4, v14                 ; kg
v_cvt_f32_u32 v3, v2
v_mul_f32 v3, 4.0, v3                    ; 4kg
v_cvt_f32_u32 v4, v1
; stage a: amp[pi] * cos(t*s2/2048 + po/4 + psi[pi])
v_lshrrev_b32 v5, 1, v1
v_lshl_add_u32 v5, v5, 7, s49
v_cvt_f32_u32 v5, v5
v_mul_f32 v5, 0x3a000000, v5             ; t/2048
v_and_b32 v6, 1, v1
v_cvt_f32_u32 v6, v6
v_mul_f32 v6, 0x3e800000, v6
v_fmac_f32 v6, v5, v3
s_cmp_eq_u32 s48, 0
s_cselect_b32 s50, 0xbe800000, 0x3e800000
s_cselect_b32 s51, 0x0000ffff, 0xffff0000
s_cmp_eq_u32 s46, 0
s_cselect_b32 s50, 0, s50
s_cselect_b32 s51, s51, -1
""".replace("s_cselect_b32 s50, 0xbe800000, 0x3e800000", "s_mov_b32 s50, 0x3e800000\ns_cselect_b32 s50, 0xbe800000, s50")
   .replace("s_cselect_b32 s51, 0x0000ffff, 0xffff0000", "s_mov_b32 s51, 0xffff0000\ns_cselect_b32 s51, 0x0000ffff, s51"))
for i in range(4):
    a(f"v_fmamk_f32 v{TMP + 2 * i}, v5, {f2u(i)}, v6")
    a(f"v_add_f32 v{TMP + 2 * i + 1}, s50, v{TMP + 2 * i}")
for i in range(8): a(f"v_cos_f32 v{TMP + i}, v{TMP + i}")
for i in range(4):
    a(f"v_cvt_pk_bf16_f32 v{FA + i}, v{TMP + 2 * i}, v{TMP + 2 * i + 1}")
for i in range(4): a(f"v_and_b32 v{FA + i}, s51, v{FA + i}")
a("v_mul_f32 v5, 0x3d800000, v4\nv_mul_f32 v6, v5, v3")
for i in range(4): a(f"v_fmamk_f32 v{TMP + i}, v5, {f2u(i)}, v6")
for i in range(4):
    a(f"v_sin_f32 v{TMP + 4 + i}, v{TMP + i}")
    a(f"v_cos_f32 v{TMP + i}, v{TMP + i}")
for i in range(4):
    a(f"v_cvt_pk_bf16_f32 v{FB + i}, v{TMP + i}, v{TMP + 4 + i}")
    a(f"v_cvt_pk_bf16_f32 v{FB + 4 + i}, -v{TMP + 4 + i}, v{TMP + i}")
a(f"""
s_lshl_b32 s50, s36, 10
s_lshl_b32 s51, s43, 2
s_add_u32 s50, s50, s51
v_mov_b32 v8, s50
s_lshr_b32 s50, s46, 4
s_lshl_b32 s50, s50, 10
s_lshl_b32 s51, s36, 8
s_add_u32 s50, s50, s51
v_lshl_add_u32 v9, v14, 2, s50
s_mov_b32 s52, {WS_F + F_B}
""")
a("v_mul_f32 v5, 0x3b000000, v4\nv_mul_f32 v6, v5, v3")
for mt in range(2):
    for r in range(4): a(f"v_fmamk_f32 v{TW + 4 * mt + r}, v5, {f2u(16 * mt + r)}, v6")
for i in range(8):
    a(f"v_sin_f32 v{TW + 8 + i}, v{TW + i}")
    a(f"v_cos_f32 v{TW + i}, v{TW + i}")
a(f"""
s_waitcnt vmcnt(0)
s_mov_b64 exec, 1
buffer_store_dword v13, v8, s[28:31], s52 offen sc1
s_mov_b64 exec, -1
buffer_load_dword v10, v9, s[28:31], s52 offen sc1
""")
stamp()
for nt in range(2):
    a(f"v_fmaak_f32 v5, v4, v{TMP + 8}, {f2u(0.5 * nt)}".replace(f"v{TMP + 8}", "v11") if False else
      (f"v_mul_f32 v5, 0x3d000000, v4" if nt == 0 else "v_add_f32 v5, 0.5, v5"))
    a("v_mul_f32 v6, v5, v3")
    for mt in range(2):
        for r in range(4): a(f"v_fmamk_f32 v{TMP + r}, v5, {f2u(16 * mt + r)}, v6")
        for r in range(4):
            a(f"v_sin_f32 v{TMP + 4 + r}, v{TMP + r}")
            a(f"v_cos_f32 v{TMP + r}, v{TMP + r}")
        for r in range(4): a(f"v_cvt_pk_bf16_f32 v{FC + 8 * nt + 4 * mt + r}, v{TMP + r}, v{TMP + 4 + r}")
GL, VA = 64, 96
a(f"""
v_and_b32 v3, 7, v1
v_lshrrev_b32 v4, 3, v1
v_lshlrev_b32 v5, 4, v3
v_lshl_add_u32 v5, v2, 9, v5
v_lshl_add_u32 v5, v4, 12, v5
s_lshl_b32 s50, s46, 15
s_lshl_b32 s51, s36, 13
s_add_u32 s50, s50, s51
s_add_u32 s50, s50, {WS_G}
v_xor_b32 v6, s36, v3
v_lshlrev_b32 v6, 4, v6
v_lshl_add_u32 v6, v3, 8, v6
v_lshl_add_u32 v6, v4, 3, v6
v_lshl_add_u32 v6, v2, 12, v6
v_xor_b32 v7, 64, v6
v_lshrrev_b32 v3, 2, v1
v_xor_b32 v3, v3, v2
v_lshlrev_b32 v3, 4, v3
v_lshl_add_u32 v3, v1, 6, v3
s_lshl_b32 s51, s36, 12
v_add_u32 v3, s51, v3
v_xor_b32 v4, 64, v3
v_and_b32 v11, 1, v2
v_lshlrev_b32 v11, 9, v11
v_lshl_add_u32 v11, v1, 5, v11
v_lshrrev_b32 v12, 1, v2
v_lshl_add_u32 v11, v12, 4, v11
s_lshl_b32 s53, s36, 8
s_add_u32 s53, s53, s49
s_lshl_b32 s53, s53, 11
s_add_u32 s54, s53, 0x40000
s_waitcnt vmcnt(0)
v_cmp_ne_u32 vcc, s41, v10
s_cbranch_vccnz L_B_poll
L_B_go:
""")
for g in range(2):
    for i in range(4):
        a(f"buffer_load_dwordx4 {vr(GL + 16 * g + 4 * i, 4)}, v5, s[28:31], s50 offen offset:{2048 * g + 128 * i} sc1")
stamp()
for g in range(2):
    a(f"s_waitcnt vmcnt({4 - 4 * g})")
    b = GL + 16 * g
    for i in range(4):
        for e in range(i + 1, 4): a(f"v_swap_b32 v{b + 4 * i + e}, v{b + 4 * e + i}")
    for e in range(4):
        a(f"v_mfma_f32_16x16x32_bf16 {vr(VA + 16 * g + 4 * e, 4)}, {vr(FA,4)}, {vr(b + 4 * e, 4)}, 0")
stamp()
VP = 64
for e in range(4):
    for rb in range(2):
        for g in range(2):
            s = VA + 16 * g + 4 * e + 2 * rb
            a(f"v_cvt_pk_bf16_f32 v{VP + 4 * e + 2 * rb + g}, v{s}, v{s + 1}")
        a(f"ds_write_b64 v{7 if e & 1 else 6}, {vr(VP + 4 * e + 2 * rb, 2)} offset:{V_B + 2048 * rb + 128 * (e >> 1)}")
a("s_waitcnt lgkmcnt(0)\ns_barrier")
stamp()
VR, W = 64, 96
for z in range(2):
    for mt in range(2):
        a(f"ds_read_b128 {vr(VR + 8 * z + 4 * mt, 4)}, v{4 if mt else 3} offset:{V_B + 2048 * z + 1024 * mt}")
for z in range(2):
    for mt in range(2):
        a(f"s_waitcnt lgkmcnt({3 - 2 * z - mt})")
        for po in range(2):
            a(f"v_mfma_f32_16x16x32_bf16 {vr(W + 16 * z + 8 * mt + 4 * po, 4)}, {vr(VR + 8 * z + 4 * mt, 4)}, {vr(FB + 4 * po, 4)}, 0")
U, UT, YA, YP = 64, 80, 128, 144
for z in range(2):
    for mt in range(2):
        wr = W + 16 * z + 8 * mt; wi = wr + 4; c = TW + 4 * mt; s = TW + 8 + 4 * mt
        for r in range(4): a(f"v_mul_f32 v{UT + r}, v{c + r}, v{wr + r}")
        for r in range(4): a(f"v_mul_f32 v{UT + 4 + r}, v{c + r}, v{wi + r}")
        for r in range(4): a(f"v_fmac_f32 v{UT + r}, v{s + r}, v{wi + r}")
        for r in range(4): a(f"v_fma_f32 v{UT + 4 + r}, -v{s + r}, v{wr + r}, v{UT + 4 + r}")
        for r in range(4): a(f"v_cvt_pk_bf16_f32 v{U + 8 * z + 4 * mt + r}, v{UT + r}, v{UT + 4 + r}")
        for nt in range(2):
            d = vr(YA + 8 * z + 4 * nt, 4)
            a(f"v_mfma_f32_16x16x32_bf16 {d}, {vr(U + 8 * z + 4 * mt, 4)}, {vr(FC + 8 * nt + 4 * mt, 4)}, {'0' if mt == 0 else d}")
for z in range(2):
    for nt in range(2):
        for j in range(2):
            s = YA + 8 * z + 4 * nt + 2 * j
            a(f"v_cvt_pk_bf16_f32 v{YP + 4 * z + 2 * nt + j}, v{s}, v{s + 1}")
    a(f"v_permlane16_swap_b32 v{YP + 4 * z}, v{YP + 4 * z + 2}")
    a(f"v_permlane16_swap_b32 v{YP + 4 * z + 1}, v{YP + 4 * z + 3}")
    a(f"buffer_store_dwordx4 {vr(YP + 4 * z, 4)}, v11, s[24:27], s{53 + z} offen offset:1024{OUTF}")
a(f"""
s_sub_u32 s56, s2, 256
s_or_b32 s56, s56, s36
s_cbranch_scc1 L_B_end
v_mov_b32 v5, s42
s_mov_b64 exec, 1
buffer_store_dword v13, v5, s[28:31], 0 offen
s_mov_b64 exec, -1
L_B_end:
""")
if STAMPS:
    stamp(); a("s_waitcnt vmcnt(0)"); stamp(); stamps_out()
probe_end()
a(f"""
L_end:
s_endpgm
L_B_poll:
s_mov_b32 s60, 0
L_B_polla:
buffer_load_dword v10, v9, s[28:31], s52 offen sc1
s_add_u32 s60, s60, 1
s_waitcnt vmcnt(0)
v_cmp_ne_u32 vcc, s41, v10
s_cbranch_vccz L_B_go
s_cmp_lt_u32 s60, {SPIN_MAX}
s_cbranch_scc1 L_B_polla
s_branch L_B_go
""")

body = a.finish()
ref = open(f"cdna_kernels/{NAME}.s.ref").read().split("\n")
hdr = [l for l in ref if l.startswith(";") and "@launch" not in l]
out = "\n".join(hdr) + f"""
; @launch grid=(512,1,1) block=(256,1,1) lds={LDS_BYTES}
.amdgcn_target "amdgcn-amd-amdhsa--gfx950"
.text
.globl {NAME}_kernel
.p2align 8
.type {NAME}_kernel,@function
""" + body + f""".p2align 8
.fill 4096, 4, 0xbf810000
.section .rodata,"a"
.p2align 6
.amdhsa_kernel {NAME}_kernel
  .amdhsa_next_free_vgpr 256
  .amdhsa_next_free_sgpr 102
  .amdhsa_accum_offset 256
  .amdhsa_group_segment_fixed_size 0
  .amdhsa_kernarg_size 112
  .amdhsa_user_sgpr_count 2
  .amdhsa_user_sgpr_kernarg_segment_ptr 1
  .amdhsa_system_sgpr_workgroup_id_x 1
.end_amdhsa_kernel
"""
dst = [x for x in sys.argv[1:] if not x.startswith("--")]
open(dst[0] if dst else f"cdna_kernels/{NAME}.s", "w").write(out)
print("nops inserted:", a.nops, file=sys.stderr)
```

```python
import sys, struct
from asmlib import Asm
NAME = "concat_heads__ssm_conv_h3__spectral_fnet__prompt"
STAMPS = "--stamps" in sys.argv
FORCE_SLOW = "--slow" in sys.argv
PROBE = [x[8:] for x in sys.argv if x.startswith("--probe=")]
PROBE = PROBE[0].split(",") if PROBE else None
SLOWPAD = "--slowpad" in sys.argv
OUTF = [x[7:] for x in sys.argv if x.startswith("--outf=")]
OUTF = " " + OUTF[0].replace("+", " ") if OUTF else ""
WSOFF = [int(x[8:], 0) for x in sys.argv if x.startswith("--wsoff=")]
WSOFF = WSOFF[0] if WSOFF else 0
PRE = [x[6:] for x in sys.argv if x.startswith("--pre=")]
PRE = PRE[0].split(",") if PRE else None
role = ["A"]

WS_U, WS_G, WS_F, WS_U2, WS_Y2, WS_ST, WS_SIZE = 0x0, 0x200000, 0x400000, 0x600000, 0x800000, 0xA00000, 0xC00000
F_1, F_2, F_HELLO, F_SLOW, F_NONCE, F_B = 0, 512, 8192, 16384, 32768, 40960
NONCE_INC = 0x9E3779B0
E_CH, E_B0 = 16512, 128
U_B = 34048
T_B = 42240
R_B = 50560
S_B = 66944
W_B = S_B + 64
X_B = 67712
V_B = X_B + 8192
LDS_BYTES = V_B + 16384
CODE_MAX = 12288
SPIN_MAX = 1 << 18

def f2u(x): return "0x%08x" % struct.unpack("<I", struct.pack("<f", x))[0]
def vr(a, n=1): return "v%d" % a if n == 1 else "v[%d:%d]" % (a, a + n - 1)

a = Asm()
nstamp = [0]
def probe_end():
    if not PROBE: return
    lab = "L_probe_" + role[0]
    a("s_waitcnt vmcnt(0) lgkmcnt(0)")
    if PROBE[1] == "end" and PROBE[0] == role[0]:
        a("s_memrealtime s[66:67]\ns_waitcnt lgkmcnt(0)")
    if PROBE[0] == role[0]:
        a("s_sub_u32 s66, s66, s62\ns_lshl_b32 s66, s66, 3\ns_add_u32 s66, s66, 3000")
    else:
        a("s_mov_b32 s66, 3000")
    a(f"""{lab}:
s_sleep 4
s_memrealtime s[68:69]
s_waitcnt lgkmcnt(0)
s_sub_u32 s68, s68, s62
s_cmp_lt_u32 s68, s66
s_cbranch_scc1 {lab}""")
def stamp():
    if PROBE:
        i = nstamp[0]; nstamp[0] += 1
        if PROBE[0] == role[0] and PROBE[1] == str(i): a("s_memrealtime s[66:67]")
    if STAMPS:
        i = nstamp[0]; nstamp[0] += 1
        a(f"s_memtime s[{64 + 2 * i}:{65 + 2 * i}]")
def stamps_out():
    if not STAMPS: return
    n = nstamp[0]
    a("s_waitcnt lgkmcnt(0)")
    a("v_mov_b32 v1, 0")
    a("v_writelane_b32 v1, s62, 0")
    for i in range(n):
        a(f"s_sub_u32 s60, s{64 + 2 * i}, s64")
        a(f"v_writelane_b32 v1, s60, {i + 1}")
    a(f"""
s_lshl_b32 s60, s2, 10
s_add_u32 s60, s60, {WS_ST + (0x40000 if role[0] == "B" else 0)}
v_lshlrev_b32 v2, 2, v0
buffer_store_dword v1, v2, s[28:31], s60 offen
""")

a(f"""
{NAME}_kernel:
s_cmp_ge_u32 s2, 256
s_cbranch_scc1 L_end
s_load_dwordx16 s[4:19], s[0:1], 0
s_load_dwordx2 s[20:21], s[0:1], 88
s_load_dwordx2 s[22:23], s[0:1], 104
""")
if STAMPS or PROBE: a("s_memrealtime s[62:63]")
stamp()
if PRE:
    a(f"""
s_lshl_b32 s37, s2, 13
s_add_u32 s37, s37, {PRE[1]}
v_lshl_add_u32 v1, v0, 4, s37
s_waitcnt lgkmcnt(0)
global_load_dwordx4 v[16:19], v1, s[{PRE[0]}:{int(PRE[0])+1}] {PRE[2] if len(PRE) > 2 else ""}
s_waitcnt vmcnt(0)
s_memrealtime s[66:67]
""")
a(f"""
s_getpc_b64 s[32:33]
s_and_b32 s34, s2, 7
s_lshr_b32 s35, s2, 3
v_lshrrev_b32 v1, 6, v0
s_lshl_b32 s37, s35, 7
v_lshl_add_u32 v2, v1, 12, s37
v_readfirstlane_b32 s36, v1
v_min_u32 v2, {CODE_MAX}, v2
global_load_dword v15, v2, s[32:33]
s_mov_b32 s27, 0x20000
s_mov_b32 s30, {WS_SIZE}
s_mov_b32 s31, 0x20000
v_and_b32 v14, 63, v0                    ; lane
s_mov_b32 s40, {WS_F + F_NONCE}
s_cmp_ge_u32 s36, 4
s_cbranch_scc1 L_B
""")

K, VV, WT, H, DD, Q, KV, ACC, AF = 16, 36, 44, 60, 76, 80, 88, 96, 128
a(f"""
s_setprio 2
v_lshrrev_b32 v1, 3, v0                  ; tp
v_and_b32 v2, 7, v0                      ; q
s_lshl_b32 s37, s35, 16
s_lshl_b32 s38, s34, 7
s_add_u32 s37, s37, s38
v_lshlrev_b32 v3, 11, v1
v_lshl_add_u32 v3, v2, 4, v3
v_add_u32 v3, s37, v3
v_add_u32 v4, 0xfffff400, v3
v_add_u32 v5, 0xfffff800, v3
v_add_u32 v6, 0xfffffc00, v3
s_mov_b32 s26, 0x200000
s_waitcnt lgkmcnt(0)
{"s_add_u32 s22, s22, %d" % WSOFF + chr(10) + "s_addc_u32 s23, s23, 0" if WSOFF else ""}
s_mov_b32 s24, s6
s_mov_b32 s25, s7
s_load_dword s41, s[22:23], s40
buffer_load_dwordx4 {vr(K+12,4)}, v3, s[24:27], 0 offen
buffer_load_dwordx4 {vr(K+16,4)}, v3, s[24:27], 0 offen offset:1024
buffer_load_dwordx4 {vr(K,4)}, v4, s[24:27], 0 offen
buffer_load_dwordx4 {vr(K+4,4)}, v5, s[24:27], 0 offen
buffer_load_dwordx4 {vr(K+8,4)}, v6, s[24:27], 0 offen
s_barrier
global_load_dwordx4 {vr(VV,4)}, v3, s[8:9]
global_load_dwordx4 {vr(VV+4,4)}, v3, s[8:9] offset:1024
s_mov_b32 s28, s22
s_mov_b32 s29, s23
; --- h addresses
s_lshl_b32 s42, s34, 18
s_lshl_b32 s43, s35, 13
s_add_u32 s42, s42, s43
v_lshrrev_b32 v4, 7, v0                  ; ch
v_and_b32 v5, 127, v0                    ; T'
v_lshlrev_b32 v12, 12, v4
v_lshl_add_u32 v12, v5, 3, v12
v_add_u32 v12, s42, v12
v_cmp_eq_u32 s[44:45], 0, v5
v_add_u32 v7, 8, v12
v_cndmask_b32 v7, v12, v7, s[44:45]
s_lshl_b32 s46, s34, 10
s_add_u32 s46, s46, {WS_F}
s_lshl_b32 s47, s36, 7
; --- table write address, zero pads
v_mul_u32_u24 v4, {E_CH}, v4
v_lshl_add_u32 v8, v5, 5, v4
v_and_b32 v5, 31, v0
v_lshl_add_u32 v4, v5, 2, v4
v_mov_b32 v6, 0
ds_write_b32 v4, v6
v_lshlrev_b32 v4, 2, v0
ds_write_b32 v4, v6 offset:{U_B - 1024}
v_and_b32 v4, 60, v4
v_add_u32 v4, {S_B}, v4
ds_write_b32 v4, v6
; --- transposition image addresses
v_mul_u32_u24 v9, 1040, v2
v_lshl_add_u32 v10, v1, 2, v9
v_xor_b32 v4, 3, v1
v_lshl_add_u32 v9, v4, 2, v9
v_add_u32 v9, {T_B}, v9
v_add_u32 v10, {T_B}, v10
s_and_b32 s48, s35, 3
v_xor_b32 v4, s48, v14
v_and_b32 v5, 1, v4
v_lshlrev_b32 v5, 7, v5                  ; ch*128
v_and_b32 v4, 2, v4
v_lshl_add_u32 v5, v4, 3, v5             ; + parity*16
v_and_b32 v4, 12, v14
v_lshl_add_u32 v5, v4, 3, v5             ; + xl*32
v_lshrrev_b32 v4, 4, v14
v_lshl_add_u32 v5, v4, 8, v5             ; + (L>>4)*256
s_mul_i32 s48, s36, 2080
v_add_u32 v11, s48, v5                   ; v11 = image re-read address (z=1: +1040)
s_lshl_b32 s48, s34, 18
s_lshl_b32 s49, s36, 16
s_add_u32 s48, s48, s49
s_lshl_b32 s49, s35, 8
s_add_u32 s48, s48, s49
s_add_u32 s49, s48, 32768
s_mov_b32 s50, 0x05040100
s_mov_b32 s51, 0x07060302
s_getreg_b32 s52, hwreg(HW_REG_XCC_ID, 0, 4)
v_lshlrev_b32 v13, 6, v2
v_add_u32 v13, {W_B}, v13
""")
if FORCE_SLOW: a("s_and_b32 s52, s35, 1")
stamp()
a(f"""
s_barrier
global_load_dwordx4 {vr(H,4)}, v7, s[12:13] offset:-8
global_load_dwordx4 {vr(H+4,4)}, v12, s[12:13] offset:1016
global_load_dwordx4 {vr(H+8,4)}, v12, s[12:13] offset:2040
global_load_dwordx4 {vr(H+12,4)}, v12, s[12:13] offset:3064
ds_read_b128 {vr(WT,4)}, v13
ds_read_b128 {vr(WT+4,4)}, v13 offset:16
ds_read_b128 {vr(WT+8,4)}, v13 offset:32
ds_read_b128 {vr(WT+12,4)}, v13 offset:48
v_lshlrev_b32 v13, 4, v2
v_add_u32 v13, {W_B + 512}, v13
ds_read_b128 {vr(DD,4)}, v13
v_and_b32 v5, 15, v14
v_lshlrev_b32 v5, 4, v5
v_lshl_add_u32 v12, v4, 13, v5           ; v12 = (L>>4)*8192 + 16*(L&15)
""")
P = ACC
a("s_waitcnt vmcnt(6)")
stamp()
for p in range(4):
    for e in range(8):
        a(f"v_perm_b32 v{P + 8 * p + e}, v{K + 4 * p + e // 2}, v{K + 4 * (p + 1) + e // 2}, s{50 + (e & 1)}")
a(f"""
s_waitcnt lgkmcnt(0)
s_add_u32 s41, s41, {NONCE_INC}
s_add_u32 s52, s52, s41
""")
KS = AF
for e in range(8):
    a(f"v_dot2_f32_bf16 v{KS + e}, v{P + 16 + e}, v{WT + 2 * e}, 0")
    a(f"v_dot2_f32_bf16 v{KS + 8 + e}, v{P + 24 + e}, v{WT + 2 * e}, 0")
for e in range(8):
    a(f"v_dot2_f32_bf16 v{KS + e}, v{P + e}, v{WT + 2 * e + 1}, v{KS + e}")
    a(f"v_dot2_f32_bf16 v{KS + 8 + e}, v{P + 8 + e}, v{WT + 2 * e + 1}, v{KS + 8 + e}")
a("s_waitcnt vmcnt(4)")
stamp()
VF = AF + 16
for row in range(2):
    for e in range(8):
        src = VV + 4 * row + e // 2
        a(f"v_and_b32 v{VF + 8 * row + e}, 0xffff0000, v{src}" if e & 1 else f"v_lshlrev_b32 v{VF + 8 * row + e}, 16, v{src}")
for e in range(8):
    a(f"v_mul_f32 v{KS + e}, v{KS + e}, v{VF + e}")
    a(f"v_mul_f32 v{KS + 8 + e}, v{KS + 8 + e}, v{VF + 8 + e}")
    a(f"v_cvt_pk_bf16_f32 v{KV + e}, v{KS + 8 + e}, v{KS + e}")
for e in range(0, 8, 2):
    a(f"ds_write2_b32 v9, v{KV + e}, v{KV + e + 1} offset0:{32 * e} offset1:{32 * e + 32}")
UB0 = VV
a(f"""
v_mov_b32 v13, s52
s_lshl_b32 s53, s35, 2
s_waitcnt lgkmcnt(0)
s_barrier
ds_read_b128 {vr(UB0,4)}, v11 offset:{T_B}
ds_read_b128 {vr(UB0+4,4)}, v11 offset:{T_B + 1040}
s_add_u32 s54, s53, s47
v_mov_b32 v4, s54
s_lshr_b32 s54, s35, 3
s_lshl_b32 s54, s54, 7
v_and_b32 v5, 31, v14
v_lshl_add_u32 v5, v5, 2, s54
s_waitcnt lgkmcnt(1)
buffer_store_dwordx4 {vr(UB0,4)}, v12, s[28:31], s48 offen
s_waitcnt lgkmcnt(0)
buffer_store_dwordx4 {vr(UB0+4,4)}, v12, s[28:31], s49 offen
""")
stamp()
a("s_waitcnt vmcnt(2)")
stamp()
T = K
a(f"""
v_cndmask_b32 v{H+3}, v{H+3}, v{H+1}, s[44:45]
v_cndmask_b32 v{H+2}, v{H+2}, v{H}, s[44:45]
v_cndmask_b32 v{H+1}, v{H+1}, v6, s[44:45]
v_cndmask_b32 v{H}, v{H}, v6, s[44:45]
""")
for nu in range(4):
    L = H + 4 * nu; t = T + 4 * nu
    a(f"""
v_alignbit_b32 v{t}, v{L+1}, v{L}, 16
v_alignbit_b32 v{t+1}, v{L+2}, v{L+1}, 16
v_mov_b32 v{t+2}, v{L+1}
v_mov_b32 v{t+3}, v{L+2}
v_mov_b32 v{L}, v{t+1}
v_alignbit_b32 v{L+1}, v{L+3}, v{L+2}, 16
ds_write_b128 v8, {vr(t,4)} offset:{E_B0 + 4096 * nu}
ds_write_b128 v8, {vr(L,4)} offset:{E_B0 + 4096 * nu + 16}
""")
a(f"""
s_waitcnt vmcnt(0)
s_mov_b64 exec, 1
buffer_store_dword v13, v4, s[28:31], s46 offen
s_mov_b64 exec, -1
buffer_load_dword v6, v5, s[28:31], s46 offen sc1
""")
stamp()
a(f"""
s_lshr_b32 s54, s36, 1                   ; ch
s_and_b32 s55, s36, 1                    ; hf
s_mul_i32 s56, s54, {E_CH}
s_lshl_b32 s57, s55, 10
s_add_u32 s56, s56, s57
v_lshl_add_u32 v8, v14, 3, s56
v_and_b32 v1, 15, v14
v_lshrrev_b32 v2, 4, v14
v_sub_u32 v7, v1, v2
s_lshl_b32 s57, s55, 3
s_sub_u32 s57, 16, s57
v_add_u32 v7, s57, v7                    ; x+16 for a=0
s_add_u32 s57, s54, 2
v_bfe_u32 v9, v7, 2, 2
v_xor_b32 v9, s57, v9
v_lshlrev_b32 v9, 4, v9
v_lshl_add_u32 v{WT}, v7, 6, v9
v_xor_b32 v{WT+1}, 32, v{WT}
v_add_u32 v7, -4, v7
v_bfe_u32 v9, v7, 2, 2
v_xor_b32 v9, s57, v9
v_lshlrev_b32 v9, 4, v9
v_lshl_add_u32 v{WT+2}, v7, 6, v9
v_xor_b32 v{WT+3}, 32, v{WT+2}
s_lshl_b32 s57, s36, 11
v_lshl_add_u32 v7, v14, 4, s57           ; v7 = w*2048 + 16*l
s_add_u32 s57, s57, {U_B}
s_mov_b32 m0, s57
s_mov_b32 s58, s42
s_mov_b32 s59, 0
s_waitcnt lgkmcnt(0)
s_barrier
""")
def afrag(kp, j): return AF + 32 * kp + 4 * j
def aread(kp):
    for j in range(8):
        off = E_B0 - 96 + 2048 * j + 512 * (kp >> 1) + 64 * (kp & 1)
        a(f"ds_read_b64 {vr(afrag(kp, j), 2)}, v8 offset:{off}")
        a(f"ds_read_b64 {vr(afrag(kp, j) + 2, 2)}, v8 offset:{off + 32}")
aread(0)
a(f"""
s_waitcnt vmcnt(0)
v_cmp_ne_u32 vcc, s52, v6
s_cbranch_vccnz L_A_poll1
L_A_go1:
buffer_load_dwordx4 v7, s[28:31], s58 offen sc1 lds
buffer_load_dwordx4 v7, s[28:31], s58 offen offset:1024 sc1 lds
""")
stamp()
aread(1); aread(2); aread(3)
a("""
s_waitcnt vmcnt(0)
s_barrier
""")
stamp()
NB = 7
BR = [16, 20, 24, 28, 32, 36, 40]
seq = [(kp, m) for kp in range(4) for m in range(8)]
def bread(i):
    kp, m = seq[i]
    a(f"ds_read_b128 {vr(BR[i % NB], 4)}, v{WT + kp} offset:{U_B - 1024 + 1024 * m}")
PF = 5
for i in range(PF): bread(i)
a(f"""
global_load_dwordx4 {vr(Q,4)}, v3, s[4:5]
global_load_dwordx4 {vr(Q+4,4)}, v3, s[4:5] offset:1024
v_and_b32 v7, 0x3ff, v3
v_lshlrev_b32 v3, 1, v3
v_sub_u32 v3, v3, v7
s_mov_b64 exec, 1
global_load_dword v15, v3, s[20:21]
s_mov_b64 exec, -1
""")
for i, (kp, m) in enumerate(seq):
    a(f"s_waitcnt lgkmcnt({min(PF - 1, len(seq) - 1 - i)})")
    for j in range(8 - m):
        c = m + j
        srcc = "0" if i == 0 else vr(ACC + 4 * c, 4)
        a(f"v_mfma_f32_16x16x32_bf16 {vr(ACC + 4 * c, 4)}, {vr(afrag(kp, j), 4)}, {vr(BR[i % NB], 4)}, {srcc}")
        if j == 0 and i + PF < len(seq): bread(i + PF)
stamp()
Y = 16; RD = 32
a(f"""
s_lshl_b32 s57, s36, 12
v_lshl_add_u32 v9, v14, 4, s57
v_xor_b32 v11, 0x1000, v9
v_and_b32 v4, 3, v1
v_lshlrev_b32 v4, 5, v4
v_lshrrev_b32 v5, 2, v1
v_lshl_add_u32 v4, v5, 8, v4
v_and_b32 v5, 1, v2
v_lshl_add_u32 v4, v5, 10, v4
v_lshrrev_b32 v5, 1, v2
v_lshl_add_u32 v4, v5, 4, v4
s_lshl_b32 s57, s36, 2
s_add_u32 s57, s57, {S_B}
v_mov_b32 v7, s57
v_xor_b32 v8, 4, v7
s_cmp_eq_u32 s55, 0
s_cbranch_scc0 L_A_red1
""")
def red(send, keep):
    for z in range(4): a(f"ds_write_b128 v9, {vr(ACC + 4 * (send + z), 4)} offset:{R_B + 1024 * z}")
    a(f"ds_write_b32 v7, v7\nL_A_rs{send}:\nds_read_b32 v6, v8")
    for z in range(4): a(f"ds_read_b128 {vr(RD + 4 * z, 4)}, v11 offset:{R_B + 1024 * z}")
    a(f"s_waitcnt lgkmcnt(4)\nv_cmp_eq_u32 vcc, 0, v6\ns_cbranch_vccnz L_A_rs{send}")
    for z in range(4):
        a(f"s_waitcnt lgkmcnt({3 - z})")
        for i in range(4): a(f"v_add_f32 v{RD + 4 * z + i}, v{RD + 4 * z + i}, v{ACC + 4 * (keep + z) + i}")
red(4, 0)
a("s_branch L_A_red2\nL_A_red1:")
red(0, 4)
a("L_A_red2:")
for z in range(4):
    a(f"v_cvt_pk_bf16_f32 v{Y + 2 * z}, v{RD + 4 * z}, v{RD + 4 * z + 1}")
    a(f"v_cvt_pk_bf16_f32 v{Y + 2 * z + 1}, v{RD + 4 * z + 2}, v{RD + 4 * z + 3}")
a(f"""
s_lshl_b32 s56, s55, 12
s_lshl_b32 s57, s54, 7
s_add_u32 s56, s56, s57
s_add_u32 s56, s56, s42
v_permlane16_swap_b32 v{Y}, v{Y+2}
v_permlane16_swap_b32 v{Y+1}, v{Y+3}
v_permlane16_swap_b32 v{Y+4}, v{Y+6}
v_permlane16_swap_b32 v{Y+5}, v{Y+7}
s_cmp_lg_u32 s59, 0
s_cbranch_scc1 L_A_slow2
buffer_store_dwordx4 {vr(Y,4)}, v4, s[28:31], s56 offen
buffer_store_dwordx4 {vr(Y+4,4)}, v4, s[28:31], s56 offen offset:2048
L_A_st2:
""")
stamp()
QF, ZQ, DF = AF, AF + 16, AF + 32
a(f"""
s_lshl_b32 s56, s55, 8
s_lshl_b32 s57, s35, 3
s_add_u32 s56, s56, s57
s_lshl_b32 s57, s54, 2
s_add_u32 s56, s56, s57
v_mov_b32 v4, s56
s_lshr_b32 s56, s35, 4
s_lshl_b32 s56, s56, 8
s_lshl_b32 s57, s36, 6
s_add_u32 s56, s56, s57
v_lshl_add_u32 v5, v1, 2, s56
s_add_u32 s46, s46, {F_2}
s_mul_i32 s57, s36, 2080
s_add_u32 s57, s57, {T_B}
s_mov_b32 m0, s57
s_waitcnt vmcnt(2)
""")
for e in range(8):
    src = DD + e // 2
    a(f"v_and_b32 v{DF + e}, 0xffff0000, v{src}" if e & 1 else f"v_lshlrev_b32 v{DF + e}, 16, v{src}")
for row in range(2):
    for e in range(8):
        src = Q + 4 * row + e // 2
        a(f"v_and_b32 v{QF + 8 * row + e}, 0xffff0000, v{src}" if e & 1 else f"v_lshlrev_b32 v{QF + 8 * row + e}, 16, v{src}")
for e in range(8):
    a(f"v_and_b32 v{ZQ + e}, 0xffff0000, v{KV + e}")
    a(f"v_lshlrev_b32 v{ZQ + 8 + e}, 16, v{KV + e}")
a(f"""
s_waitcnt vmcnt(0)
s_mov_b64 exec, 1
s_cmp_lg_u32 s59, 0
s_cbranch_scc1 L_A_slowf2
buffer_store_dword v13, v4, s[28:31], s46 offen
L_A_f2:
s_mov_b64 exec, -1
buffer_load_dword v6, v5, s[28:31], s46 offen sc1
""")
stamp()
for i in range(16):
    a(f"v_mul_f32 v{ZQ + i}, v{ZQ + i}, v{DF + (i & 7)}")
for i in range(16):
    a(f"v_mul_f32 v{ZQ + i}, v{ZQ + i}, v{QF + i}")
a(f"""
s_waitcnt vmcnt(0)
v_cmp_ne_u32 vcc, v13, v6
s_cbranch_vccnz L_A_poll2
L_A_go2:
buffer_load_dwordx4 v12, s[28:31], s48 offen sc1 lds
s_add_u32 s57, s57, 1040
s_mov_b32 m0, s57
v_mov_b32 v8, {S_B}
buffer_load_dwordx4 v12, s[28:31], s49 offen sc1 lds
""")
stamp()
YD, YF, O = 16, 24, 40
a(f"""
s_waitcnt vmcnt(0)
ds_write_b32 v7, v7 offset:16
L_A_ys:
ds_read_b128 {vr(O,4)}, v8 offset:16
""")
for e in range(0, 8, 2):
    a(f"ds_read2_b32 {vr(YD + e, 2)}, v10 offset0:{32 * e} offset1:{32 * e + 32}")
a(f"""
s_waitcnt lgkmcnt(4)
v_min3_u32 v{O}, v{O}, v{O+1}, v{O+2}
v_min_u32 v{O}, v{O}, v{O+3}
v_cmp_eq_u32 vcc, 0, v{O}
s_cbranch_vccnz L_A_ys
""")
stamp()
for e in range(0, 8, 2):
    a(f"s_waitcnt lgkmcnt({3 - e // 2})")
    for ee in (e, e + 1):
        a(f"v_lshlrev_b32 v{YF + ee}, 16, v{YD + ee}")
        a(f"v_and_b32 v{YF + 8 + ee}, 0xffff0000, v{YD + ee}")
        a(f"v_fmac_f32 v{ZQ + ee}, v{QF + ee}, v{YF + ee}")
        a(f"v_fmac_f32 v{ZQ + 8 + ee}, v{QF + 8 + ee}, v{YF + 8 + ee}")
    a(f"v_cvt_pk_bf16_f32 v{O + e // 2}, v{ZQ + e}, v{ZQ + e + 1}")
    a(f"v_cvt_pk_bf16_f32 v{O + 4 + e // 2}, v{ZQ + 8 + e}, v{ZQ + 8 + e + 1}")
a(f"""
global_store_dwordx4 v3, {vr(O,4)}, s[20:21]{OUTF}
global_store_dwordx4 v3, {vr(O+4,4)}, s[20:21] offset:2048{OUTF}
L_A_end:
""")
if STAMPS:
    stamp(); a("s_waitcnt vmcnt(0)"); stamp(); stamps_out()
probe_end()
a("s_endpgm")

a(f"""
L_A_poll1:
s_mov_b32 s60, 0
L_A_poll1a:
buffer_load_dword v6, v5, s[28:31], s46 offen sc1
s_add_u32 s60, s60, 1
s_waitcnt vmcnt(0)
v_cmp_ne_u32 vcc, s52, v6
s_cbranch_vccz L_A_go1
s_and_b32 s61, s60, 15
s_cbranch_scc1 L_A_poll1a
s_add_u32 s61, s38, {WS_F + F_HELLO}
v_mov_b32 v9, s53
s_mov_b64 exec, 1
buffer_store_dword v13, v9, s[28:31], s61 offen sc1
s_mov_b64 exec, -1
v_and_b32 v9, 31, v14
v_lshlrev_b32 v9, 2, v9
buffer_load_dword v6, v9, s[28:31], s61 offen sc1
s_waitcnt vmcnt(0)
v_cmp_ne_u32 vcc, s52, v6
v_subrev_u32 v6, s41, v6
v_cmp_gt_u32 s[32:33], 16, v6
s_and_b64 vcc, vcc, s[32:33]
s_cbranch_vccnz L_A_slow1
s_cmp_lt_u32 s60, {SPIN_MAX}
s_cbranch_scc1 L_A_poll1a
s_branch L_A_go1
L_A_slow1:
s_mov_b32 s59, 1
{"s_sleep 127" + chr(10) + "s_sleep 127" + chr(10) + "s_sleep 127" + chr(10) + "s_sleep 127" + chr(10) + "s_sleep 127" if SLOWPAD else ""}
s_add_u32 s48, s48, {WS_U2}
s_add_u32 s49, s49, {WS_U2}
buffer_store_dwordx4 {vr(UB0,4)}, v12, s[28:31], s48 offen sc1
buffer_store_dwordx4 {vr(UB0+4,4)}, v12, s[28:31], s49 offen sc1
s_add_u32 s48, s48, {WS_Y2 - WS_U2}
s_add_u32 s49, s49, {WS_Y2 - WS_U2}
s_add_u32 s58, s42, {WS_U2}
s_add_u32 s42, s42, {WS_Y2}
s_add_u32 s46, s46, {F_SLOW}
v_mov_b32 v13, s41
s_waitcnt vmcnt(0)
s_mov_b64 exec, 1
buffer_store_dword v13, v4, s[28:31], s46 offen sc1
s_mov_b64 exec, -1
s_mov_b32 s60, 0
L_A_poll1s:
buffer_load_dword v6, v5, s[28:31], s46 offen sc1
s_add_u32 s60, s60, 1
s_waitcnt vmcnt(0)
v_cmp_ne_u32 vcc, s41, v6
s_cbranch_vccz L_A_go1
s_cmp_lt_u32 s60, {SPIN_MAX}
s_cbranch_scc1 L_A_poll1s
s_branch L_A_go1
L_A_slow2:
buffer_store_dwordx4 {vr(Y,4)}, v4, s[28:31], s56 offen sc1
buffer_store_dwordx4 {vr(Y+4,4)}, v4, s[28:31], s56 offen offset:2048 sc1
s_branch L_A_st2
L_A_slowf2:
buffer_store_dword v13, v4, s[28:31], s46 offen sc1
s_branch L_A_f2
L_A_poll2:
s_mov_b32 s60, 0
L_A_poll2a:
buffer_load_dword v6, v5, s[28:31], s46 offen sc1
s_add_u32 s60, s60, 1
s_waitcnt vmcnt(0)
v_cmp_ne_u32 vcc, v13, v6
s_cbranch_vccz L_A_go2
s_cmp_lt_u32 s60, {SPIN_MAX}
s_cbranch_scc1 L_A_poll2a
s_branch L_A_go2
""")

nstamp[0] = 1; role[0] = "B"
F1, XF, G0, GP = 16, 48, 80, 96
a(f"""
L_B:
s_sub_u32 s36, s36, 4
v_and_b32 v0, 255, v0
s_and_b32 s37, s35, 1
s_lshl_b32 s38, s34, 1
s_add_u32 s37, s37, s38                  ; db
s_lshr_b32 s38, s35, 1                   ; s2
s_lshl_b32 s39, s38, 10
s_lshl_b32 s42, s37, 6
s_add_u32 s39, s39, s42
s_lshl_b32 s42, s36, 19
s_add_u32 s39, s39, s42
v_lshrrev_b32 v1, 2, v14
v_and_b32 v2, 3, v14
v_lshlrev_b32 v3, 14, v1
v_lshl_add_u32 v3, v2, 4, v3
v_add_u32 v3, s39, v3
v_add_u32 v4, 0x40000, v3
s_lshl_b32 s42, s36, 11
s_add_u32 s42, s42, {X_B}
s_mov_b32 m0, s42
s_add_u32 s42, s42, 1024
s_lshl_b32 s43, s34, 9
s_lshl_b32 s44, s36, 7
s_add_u32 s43, s43, s44
v_lshl_add_u32 v5, v14, 4, s43
s_lshr_b32 s43, s43, 2
v_lshl_add_u32 v6, v14, 4, s43
s_lshr_b32 s45, s44, 2
s_add_u32 s44, s44, {W_B}
s_add_u32 s45, s45, {W_B + 512}
s_waitcnt lgkmcnt(0)
{"s_add_u32 s22, s22, %d" % WSOFF + chr(10) + "s_addc_u32 s23, s23, 0" if WSOFF else ""}
global_load_lds_dwordx4 v3, s[16:17]
s_mov_b32 m0, s42
s_load_dword s41, s[22:23], s40
global_load_lds_dwordx4 v4, s[16:17]
s_mov_b32 m0, s44
s_mov_b64 exec, 0xff
global_load_lds_dwordx4 v5, s[10:11]
s_mov_b32 m0, s45
s_mov_b64 exec, 3
global_load_lds_dwordx4 v6, s[14:15]
s_mov_b64 exec, -1
s_barrier
s_mov_b32 s28, s22
s_mov_b32 s29, s23
s_mov_b32 s24, s20
s_mov_b32 s25, s21
s_mov_b32 s26, 0x400000
v_and_b32 v5, 31, v14
v_lshrrev_b32 v6, 5, v14
v_lshlrev_b32 v7, 16, v6
v_lshl_add_u32 v7, v5, 2, v7
s_lshl_b32 s43, s37, 4
s_add_u32 s43, s43, s38
s_lshl_b32 s44, s43, 7
s_lshl_b32 s45, s36, 19
s_add_u32 s44, s44, s45
s_add_u32 s44, s44, {WS_G}
s_lshl_b32 s45, s36, 5
v_add_u32 v8, s45, v5
v_lshrrev_b32 v9, 1, v8                  ; frequency
v_and_b32 v10, 1, v8
v_cmp_eq_u32 vcc, 1, v8
v_cvt_f32_u32 v11, v10
v_mul_f32 v11, 0x3e800000, v11           ; phase
v_and_b32 v12, 1, v9
v_cndmask_b32 v9, v9, 64, vcc
v_cndmask_b32 v11, v11, 0, vcc
v_mul_u32_u24 v12, 0x8000, v12
v_lshl_or_b32 v12, v12, 16, v12
v_cvt_f32_u32 v9, v9
v_mul_f32 v9, 0x3c000000, v9
v_cvt_f32_u32 v6, v6
v_mul_f32 v6, 4.0, v6
v_fmac_f32 v11, v9, v6
""")
stamp()
TMP = XF
for kap in range(4):
    for eps in range(8):
        c = 16 * kap + 8 * (eps >> 2) + (eps & 3)
        a(f"v_fmamk_f32 v{TMP + eps}, v9, {f2u(c)}, v11")
    for eps in range(8): a(f"v_cos_f32 v{TMP + eps}, v{TMP + eps}")
    for i in range(4): a(f"v_cvt_pk_bf16_f32 v{F1 + 4 * kap + i}, v{TMP + 2 * i}, v{TMP + 2 * i + 1}")
    for i in range(4): a(f"v_xor_b32 v{F1 + 16 + 4 * kap + i}, v12, v{F1 + 4 * kap + i}")
a(f"""
v_lshrrev_b32 v5, 5, v14
v_lshlrev_b32 v5, 8, v5
v_and_b32 v6, 3, v1
v_lshl_add_u32 v5, v6, 6, v5
v_bfe_u32 v6, v14, 4, 1
v_lshl_add_u32 v5, v6, 5, v5
v_lshl_add_u32 v5, v2, 3, v5
v_add_u32 v5, {X_B}, v5
""")
stamp()
a(f"""
s_waitcnt vmcnt(0) lgkmcnt(0)
s_barrier
""")
stamp()
for i in range(16): a(f"ds_read_b64_tr_b16 {vr(XF + 2 * i, 2)}, v5 offset:{512 * i}")
a(f"s_add_u32 s41, s41, {NONCE_INC}")
for kap in range(8):
    a(f"s_waitcnt lgkmcnt({14 - 2 * kap})")
    a(f"v_mfma_f32_32x32x16_bf16 {vr(G0,16)}, {vr(F1 + 4 * kap, 4)}, {vr(XF + 4 * kap, 4)}, {'0' if kap == 0 else vr(G0,16)}")
a(f"""
s_lshl_b32 s46, s34, 3
s_lshr_b32 s47, s35, 2
s_add_u32 s46, s46, s47                  ; slot
s_and_b32 s47, s35, 1
s_bfe_u32 s48, s35, 0x10001              ; class
s_sub_u32 s49, 128, s46
s_cmp_eq_u32 s46, 0
s_cselect_b32 s49, 64, s49
s_cmp_eq_u32 s48, 0
s_cselect_b32 s49, s46, s49
s_lshl_b32 s47, s47, 10
s_add_u32 s49, s49, s47
v_mov_b32 v13, s41
""")
for j in range(4):
    for rb in range(2):
        a(f"v_cvt_pk_bf16_f32 v{GP + 2 * j + rb}, v{G0 + 4 * j + 2 * rb}, v{G0 + 4 * j + 2 * rb + 1}")
        a(f"buffer_store_dword v{GP + 2 * j + rb}, v7, s[28:31], s44 offen sc1")
        a(f"s_add_u32 s44, s44, {32768 if rb == 0 else 3 * 32768}")
stamp()
a(f"""
s_lshl_b32 s55, s34, 18
s_lshl_b32 s56, s35, 13
s_add_u32 s55, s55, s56
s_lshl_b32 s56, s36, 11
s_add_u32 s55, s55, s56
s_add_u32 s56, s22, s55
s_addc_u32 s57, s23, 0
s_lshl_b32 s55, s34, 10
s_lshl_b32 s58, s36, 8
s_add_u32 s55, s55, s58
s_add_u32 s55, s55, {WS_F}
s_load_dword s59, s[22:23], s55
s_add_u32 s55, s55, 128
s_load_dword s59, s[22:23], s55
""")
for i in range(16): a(f"s_load_dword s59, s[56:57], {128 * i}")
FA, FB, FC, TW = 16, 20, 28, 44
TMP = 64
a(f"""
v_and_b32 v1, 15, v14                    ; n / m
v_lshrrev_b32 v2, 4, v14                 ; kg
v_cvt_f32_u32 v3, v2
v_mul_f32 v3, 4.0, v3                    ; 4kg
v_cvt_f32_u32 v4, v1
; stage a: amp[pi] * cos(t*s2/2048 + po/4 + psi[pi])
v_lshrrev_b32 v5, 1, v1
v_lshl_add_u32 v5, v5, 7, s49
v_cvt_f32_u32 v5, v5
v_mul_f32 v5, 0x3a000000, v5             ; t/2048
v_and_b32 v6, 1, v1
v_cvt_f32_u32 v6, v6
v_mul_f32 v6, 0x3e800000, v6
v_fmac_f32 v6, v5, v3
s_cmp_eq_u32 s48, 0
s_cselect_b32 s50, 0xbe800000, 0x3e800000
s_cselect_b32 s51, 0x0000ffff, 0xffff0000
s_cmp_eq_u32 s46, 0
s_cselect_b32 s50, 0, s50
s_cselect_b32 s51, s51, -1
""".replace("s_cselect_b32 s50, 0xbe800000, 0x3e800000", "s_mov_b32 s50, 0x3e800000\ns_cselect_b32 s50, 0xbe800000, s50")
   .replace("s_cselect_b32 s51, 0x0000ffff, 0xffff0000", "s_mov_b32 s51, 0xffff0000\ns_cselect_b32 s51, 0x0000ffff, s51"))
for i in range(4):
    a(f"v_fmamk_f32 v{TMP + 2 * i}, v5, {f2u(i)}, v6")
    a(f"v_add_f32 v{TMP + 2 * i + 1}, s50, v{TMP + 2 * i}")
for i in range(8): a(f"v_cos_f32 v{TMP + i}, v{TMP + i}")
for i in range(4):
    a(f"v_cvt_pk_bf16_f32 v{FA + i}, v{TMP + 2 * i}, v{TMP + 2 * i + 1}")
for i in range(4): a(f"v_and_b32 v{FA + i}, s51, v{FA + i}")
a("v_mul_f32 v5, 0x3d800000, v4\nv_mul_f32 v6, v5, v3")
for i in range(4): a(f"v_fmamk_f32 v{TMP + i}, v5, {f2u(i)}, v6")
for i in range(4):
    a(f"v_sin_f32 v{TMP + 4 + i}, v{TMP + i}")
    a(f"v_cos_f32 v{TMP + i}, v{TMP + i}")
for i in range(4):
    a(f"v_cvt_pk_bf16_f32 v{FB + i}, v{TMP + i}, v{TMP + 4 + i}")
    a(f"v_cvt_pk_bf16_f32 v{FB + 4 + i}, -v{TMP + 4 + i}, v{TMP + i}")
a(f"""
s_lshl_b32 s50, s36, 10
s_lshl_b32 s51, s43, 2
s_add_u32 s50, s50, s51
v_mov_b32 v8, s50
s_lshr_b32 s50, s46, 4
s_lshl_b32 s50, s50, 10
s_lshl_b32 s51, s36, 8
s_add_u32 s50, s50, s51
v_lshl_add_u32 v9, v14, 2, s50
s_mov_b32 s52, {WS_F + F_B}
""")
a("v_mul_f32 v5, 0x3b000000, v4\nv_mul_f32 v6, v5, v3")
for mt in range(2):
    for r in range(4): a(f"v_fmamk_f32 v{TW + 4 * mt + r}, v5, {f2u(16 * mt + r)}, v6")
for i in range(8):
    a(f"v_sin_f32 v{TW + 8 + i}, v{TW + i}")
    a(f"v_cos_f32 v{TW + i}, v{TW + i}")
stamp()
a(f"""
s_barrier
s_barrier
s_barrier
s_waitcnt vmcnt(0)
s_mov_b64 exec, 1
buffer_store_dword v13, v8, s[28:31], s52 offen sc1
s_mov_b64 exec, -1
buffer_load_dword v10, v9, s[28:31], s52 offen sc1
""")
stamp()
for nt in range(2):
    a(f"v_fmaak_f32 v5, v4, v{TMP + 8}, {f2u(0.5 * nt)}".replace(f"v{TMP + 8}", "v11") if False else
      (f"v_mul_f32 v5, 0x3d000000, v4" if nt == 0 else "v_add_f32 v5, 0.5, v5"))
    a("v_mul_f32 v6, v5, v3")
    for mt in range(2):
        for r in range(4): a(f"v_fmamk_f32 v{TMP + r}, v5, {f2u(16 * mt + r)}, v6")
        for r in range(4):
            a(f"v_sin_f32 v{TMP + 4 + r}, v{TMP + r}")
            a(f"v_cos_f32 v{TMP + r}, v{TMP + r}")
        for r in range(4): a(f"v_cvt_pk_bf16_f32 v{FC + 8 * nt + 4 * mt + r}, v{TMP + r}, v{TMP + 4 + r}")
GL, VA = 64, 96
a(f"""
v_and_b32 v3, 7, v1
v_lshrrev_b32 v4, 3, v1
v_lshlrev_b32 v5, 4, v3
v_lshl_add_u32 v5, v2, 9, v5
v_lshl_add_u32 v5, v4, 12, v5
s_lshl_b32 s50, s46, 15
s_lshl_b32 s51, s36, 13
s_add_u32 s50, s50, s51
s_add_u32 s50, s50, {WS_G}
v_xor_b32 v6, s36, v3
v_lshlrev_b32 v6, 4, v6
v_lshl_add_u32 v6, v3, 8, v6
v_lshl_add_u32 v6, v4, 3, v6
v_lshl_add_u32 v6, v2, 12, v6
v_add_u32 v6, {V_B}, v6
v_xor_b32 v7, 64, v6
v_lshrrev_b32 v3, 2, v1
v_xor_b32 v3, v3, v2
v_lshlrev_b32 v3, 4, v3
v_lshl_add_u32 v3, v1, 6, v3
s_lshl_b32 s51, s36, 12
s_add_u32 s51, s51, {V_B}
v_add_u32 v3, s51, v3
v_xor_b32 v4, 64, v3
s_lshl_b32 s51, s36, 2
s_add_u32 s51, s51, {S_B}
v_mov_b32 v8, s51
v_and_b32 v11, 1, v2
v_lshlrev_b32 v11, 9, v11
v_lshl_add_u32 v11, v1, 5, v11
v_lshrrev_b32 v12, 1, v2
v_lshl_add_u32 v11, v12, 4, v11
s_lshl_b32 s53, s36, 8
s_add_u32 s53, s53, s49
s_lshl_b32 s53, s53, 11
s_add_u32 s54, s53, 0x40000
s_waitcnt vmcnt(0) lgkmcnt(0)
v_cmp_ne_u32 vcc, s41, v10
s_cbranch_vccnz L_B_poll
L_B_go:
""")
for g in range(2):
    for i in range(4):
        a(f"buffer_load_dwordx4 {vr(GL + 16 * g + 4 * i, 4)}, v5, s[28:31], s50 offen offset:{2048 * g + 128 * i} sc1")
stamp()
for g in range(2):
    a(f"s_waitcnt vmcnt({4 - 4 * g})")
    b = GL + 16 * g
    for i in range(4):
        for e in range(i + 1, 4): a(f"v_swap_b32 v{b + 4 * i + e}, v{b + 4 * e + i}")
    for e in range(4):
        a(f"v_mfma_f32_16x16x32_bf16 {vr(VA + 16 * g + 4 * e, 4)}, {vr(FA,4)}, {vr(b + 4 * e, 4)}, 0")
stamp()
VP = 64
for e in range(4):
    for rb in range(2):
        for g in range(2):
            s = VA + 16 * g + 4 * e + 2 * rb
            a(f"v_cvt_pk_bf16_f32 v{VP + 4 * e + 2 * rb + g}, v{s}, v{s + 1}")
        a(f"ds_write_b64 v{7 if e & 1 else 6}, {vr(VP + 4 * e + 2 * rb, 2)} offset:{2048 * rb + 128 * (e >> 1)}")
VR, W = 80, 96
a(f"""
ds_write_b32 v8, v8 offset:32
v_mov_b32 v8, {S_B}
L_B_vs:
ds_read_b128 {vr(60,4)}, v8 offset:32
""")
for z in range(2):
    for mt in range(2):
        a(f"ds_read_b128 {vr(VR + 8 * z + 4 * mt, 4)}, v{4 if mt else 3} offset:{2048 * z + 1024 * mt}")
a(f"""
s_waitcnt lgkmcnt(4)
v_min3_u32 v60, v60, v61, v62
v_min_u32 v60, v60, v63
v_cmp_eq_u32 vcc, 0, v60
s_cbranch_vccnz L_B_vs
""")
stamp()
for z in range(2):
    for mt in range(2):
        a(f"s_waitcnt lgkmcnt({3 - 2 * z - mt})")
        for po in range(2):
            a(f"v_mfma_f32_16x16x32_bf16 {vr(W + 16 * z + 8 * mt + 4 * po, 4)}, {vr(VR + 8 * z + 4 * mt, 4)}, {vr(FB + 4 * po, 4)}, 0")
U, UT, YA, YP = 64, 160, 128, 144
for z in range(2):
    for mt in range(2):
        wr = W + 16 * z + 8 * mt; wi = wr + 4; c = TW + 4 * mt; s = TW + 8 + 4 * mt
        for r in range(4): a(f"v_mul_f32 v{UT + r}, v{c + r}, v{wr + r}")
        for r in range(4): a(f"v_mul_f32 v{UT + 4 + r}, v{c + r}, v{wi + r}")
        for r in range(4): a(f"v_fmac_f32 v{UT + r}, v{s + r}, v{wi + r}")
        for r in range(4): a(f"v_fma_f32 v{UT + 4 + r}, -v{s + r}, v{wr + r}, v{UT + 4 + r}")
        for r in range(4): a(f"v_cvt_pk_bf16_f32 v{U + 8 * z + 4 * mt + r}, v{UT + r}, v{UT + 4 + r}")
        for nt in range(2):
            d = vr(YA + 8 * z + 4 * nt, 4)
            a(f"v_mfma_f32_16x16x32_bf16 {d}, {vr(U + 8 * z + 4 * mt, 4)}, {vr(FC + 8 * nt + 4 * mt, 4)}, {'0' if mt == 0 else d}")
for z in range(2):
    for nt in range(2):
        for j in range(2):
            s = YA + 8 * z + 4 * nt + 2 * j
            a(f"v_cvt_pk_bf16_f32 v{YP + 4 * z + 2 * nt + j}, v{s}, v{s + 1}")
    a(f"v_permlane16_swap_b32 v{YP + 4 * z}, v{YP + 4 * z + 2}")
    a(f"v_permlane16_swap_b32 v{YP + 4 * z + 1}, v{YP + 4 * z + 3}")
    a(f"buffer_store_dwordx4 {vr(YP + 4 * z, 4)}, v11, s[24:27], s{53 + z} offen offset:1024{OUTF}")
a(f"""
s_or_b32 s56, s2, s36
s_cbranch_scc1 L_B_end
v_mov_b32 v5, s40
s_mov_b64 exec, 1
buffer_store_dword v13, v5, s[28:31], 0 offen
s_mov_b64 exec, -1
L_B_end:
""")
if STAMPS:
    stamp(); a("s_waitcnt vmcnt(0)"); stamp(); stamps_out()
probe_end()
a(f"""
L_end:
s_endpgm
L_B_poll:
s_mov_b32 s60, 0
L_B_polla:
buffer_load_dword v10, v9, s[28:31], s52 offen sc1
s_add_u32 s60, s60, 1
s_waitcnt vmcnt(0)
v_cmp_ne_u32 vcc, s41, v10
s_cbranch_vccz L_B_go
s_cmp_lt_u32 s60, {SPIN_MAX}
s_cbranch_scc1 L_B_polla
s_branch L_B_go
""")

body = a.finish()
ref = open(f"cdna_kernels/{NAME}.s.ref").read().split("\n")
hdr = [l for l in ref if l.startswith(";") and "@launch" not in l]
out = "\n".join(hdr) + f"""
; @launch grid=(256,1,1) block=(512,1,1) lds={LDS_BYTES}
.amdgcn_target "amdgcn-amd-amdhsa--gfx950"
.text
.globl {NAME}_kernel
.p2align 8
.type {NAME}_kernel,@function
""" + body + f""".p2align 8
.fill 1024, 4, 0xbf810000
.section .rodata,"a"
.p2align 6
.amdhsa_kernel {NAME}_kernel
  .amdhsa_next_free_vgpr 256
  .amdhsa_next_free_sgpr 102
  .amdhsa_accum_offset 256
  .amdhsa_group_segment_fixed_size 0
  .amdhsa_kernarg_size 112
  .amdhsa_user_sgpr_count 2
  .amdhsa_user_sgpr_kernarg_segment_ptr 1
  .amdhsa_system_sgpr_workgroup_id_x 1
.end_amdhsa_kernel
"""
dst = [x for x in sys.argv[1:] if not x.startswith("--")]
open(dst[0] if dst else f"cdna_kernels/{NAME}.s", "w").write(out)
print("nops inserted:", a.nops, file=sys.stderr)
```

```python
import sys, struct
from asmlib import Asm
NAME = "concat_heads__ssm_conv_h3__spectral_fnet__prompt"
STAMPS = "--stamps" in sys.argv
FORCE_SLOW = "--slow" in sys.argv
PROBE = [x[8:] for x in sys.argv if x.startswith("--probe=")]
PROBE = PROBE[0].split(",") if PROBE else None
SLOWPAD = "--slowpad" in sys.argv
OUTF = [x[7:] for x in sys.argv if x.startswith("--outf=")]
OUTF = " " + OUTF[0].replace("+", " ") if OUTF else ""
WSOFF = [int(x[8:], 0) for x in sys.argv if x.startswith("--wsoff=")]
WSOFF = WSOFF[0] if WSOFF else 0x10000000 - 0xC00000
TOUCH = [x[8:] for x in sys.argv if x.startswith('--touch=')]
TOUCH = TOUCH[0] if TOUCH else 'h'
TF = ' sc1' + (' nt' if '--nt' in sys.argv else '')
PRE = [x[6:] for x in sys.argv if x.startswith("--pre=")]
PRE = PRE[0].split(",") if PRE else None
role = ["A"]

WS_U, WS_G, WS_F, WS_U2, WS_Y2, WS_ST, WS_SIZE = 0x0, 0x200000, 0x400000, 0x600000, 0x800000, 0xA00000, 0xC00000
F_1, F_2, F_HELLO, F_SLOW, F_NONCE, F_B = 0, 512, 8192, 16384, 32768, 40960
NONCE_INC = 0x9E3779B0
E_CH, E_B0 = 16512, 128
U_B = 34048
T_B = 42240
R_B = 50560
S_B = 66944
W_B = S_B + 64
X_B = 67712
V_B = X_B + 8192
LDS_BYTES = V_B + 16384
CODE_MAX = 12288
SPIN_MAX = 1 << 18

def f2u(x): return "0x%08x" % struct.unpack("<I", struct.pack("<f", x))[0]
def vr(a, n=1): return "v%d" % a if n == 1 else "v[%d:%d]" % (a, a + n - 1)

a = Asm()
nstamp = [0]
def probe_end():
    if not PROBE: return
    lab = "L_probe_" + role[0]
    a("s_waitcnt vmcnt(0) lgkmcnt(0)")
    if PROBE[1] == "end" and PROBE[0] == role[0]:
        a("s_memrealtime s[66:67]\ns_waitcnt lgkmcnt(0)")
    if PROBE[0] == role[0]:
        a("s_sub_u32 s66, s66, s62\ns_lshl_b32 s66, s66, 3\ns_add_u32 s66, s66, 3000")
    else:
        a("s_mov_b32 s66, 3000")
    a(f"""{lab}:
s_sleep 4
s_memrealtime s[68:69]
s_waitcnt lgkmcnt(0)
s_sub_u32 s68, s68, s62
s_cmp_lt_u32 s68, s66
s_cbranch_scc1 {lab}""")
def stamp():
    if PROBE:
        i = nstamp[0]; nstamp[0] += 1
        if PROBE[0] == role[0] and PROBE[1] == str(i): a("s_memrealtime s[66:67]")
    if STAMPS:
        i = nstamp[0]; nstamp[0] += 1
        a(f"s_memtime s[{64 + 2 * i}:{65 + 2 * i}]")
def stamps_out():
    if not STAMPS: return
    n = nstamp[0]
    a("s_waitcnt lgkmcnt(0)")
    a("v_mov_b32 v1, 0")
    a("v_writelane_b32 v1, s62, 0")
    for i in range(n):
        a(f"s_sub_u32 s60, s{64 + 2 * i}, s64")
        a(f"v_writelane_b32 v1, s60, {i + 1}")
    a(f"""
s_lshl_b32 s60, s2, 10
s_add_u32 s60, s60, {WS_ST + (0x40000 if role[0] == "B" else 0)}
v_lshlrev_b32 v2, 2, v0
buffer_store_dword v1, v2, s[28:31], s60 offen
""")

a(f"""
{NAME}_kernel:
s_cmp_ge_u32 s2, 256
s_cbranch_scc1 L_end
s_load_dwordx16 s[4:19], s[0:1], 0
s_load_dwordx2 s[20:21], s[0:1], 88
s_load_dwordx2 s[22:23], s[0:1], 104
""")
if STAMPS or PROBE: a("s_memrealtime s[62:63]")
stamp()
if PRE:
    a(f"""
s_lshl_b32 s37, s2, 13
s_add_u32 s37, s37, {PRE[1]}
v_lshl_add_u32 v1, v0, 4, s37
s_waitcnt lgkmcnt(0)
global_load_dwordx4 v[16:19], v1, s[{PRE[0]}:{int(PRE[0])+1}] {PRE[2] if len(PRE) > 2 else ""}
s_waitcnt vmcnt(0)
s_memrealtime s[66:67]
""")
a(f"""
s_getpc_b64 s[32:33]
s_and_b32 s34, s2, 7
s_lshr_b32 s35, s2, 3
v_lshrrev_b32 v1, 6, v0
s_lshl_b32 s37, s35, 7
v_lshl_add_u32 v2, v1, 12, s37
v_readfirstlane_b32 s36, v1
v_min_u32 v2, {CODE_MAX}, v2
global_load_dword v15, v2, s[32:33]
s_mov_b32 s27, 0x20000
s_mov_b32 s30, {WS_SIZE}
s_mov_b32 s31, 0x20000
v_and_b32 v14, 63, v0                    ; lane
s_mov_b32 s40, {WS_F + F_NONCE}
s_cmp_ge_u32 s36, 4
s_cbranch_scc1 L_B
""")

K, VV, WT, H, DD, Q, KV, ACC, AF = 16, 36, 44, 60, 76, 80, 88, 96, 128

def touch():
    a(f"""
v_lshlrev_b32 v15, 5, v0
buffer_load_dword v15, v15, s[28:31], s42 offen{TF}
v_lshlrev_b32 v{AF + 64}, 2, v0
buffer_load_dword v{AF + 64}, v{AF + 64}, s[28:31], s46 offen{TF}
""")
NT = {"h": 2, "v": 2, "st": 0, "no": 0}[TOUCH]
a(f"""
s_setprio 2
v_lshrrev_b32 v1, 3, v0                  ; tp
v_and_b32 v2, 7, v0                      ; q
s_lshl_b32 s37, s35, 16
s_lshl_b32 s38, s34, 7
s_add_u32 s37, s37, s38
v_lshlrev_b32 v3, 11, v1
v_lshl_add_u32 v3, v2, 4, v3
v_add_u32 v3, s37, v3
v_add_u32 v4, 0xfffff400, v3
v_add_u32 v5, 0xfffff800, v3
v_add_u32 v6, 0xfffffc00, v3
s_mov_b32 s26, 0x200000
s_waitcnt lgkmcnt(0)
{"s_add_u32 s22, s22, %d" % WSOFF + chr(10) + "s_addc_u32 s23, s23, 0" if WSOFF else ""}
s_mov_b32 s24, s6
s_mov_b32 s25, s7
s_load_dword s41, s[22:23], s40
buffer_load_dwordx4 {vr(K+12,4)}, v3, s[24:27], 0 offen
buffer_load_dwordx4 {vr(K+16,4)}, v3, s[24:27], 0 offen offset:1024
buffer_load_dwordx4 {vr(K,4)}, v4, s[24:27], 0 offen
buffer_load_dwordx4 {vr(K+4,4)}, v5, s[24:27], 0 offen
buffer_load_dwordx4 {vr(K+8,4)}, v6, s[24:27], 0 offen
s_barrier
global_load_dwordx4 {vr(VV,4)}, v3, s[8:9]
global_load_dwordx4 {vr(VV+4,4)}, v3, s[8:9] offset:1024
s_mov_b32 s28, s22
s_mov_b32 s29, s23
; --- h addresses
s_lshl_b32 s42, s34, 18
s_lshl_b32 s43, s35, 13
s_add_u32 s42, s42, s43
v_lshrrev_b32 v4, 7, v0                  ; ch
v_and_b32 v5, 127, v0                    ; T'
v_lshlrev_b32 v12, 12, v4
v_lshl_add_u32 v12, v5, 3, v12
v_add_u32 v12, s42, v12
v_cmp_eq_u32 s[44:45], 0, v5
v_add_u32 v7, 8, v12
v_cndmask_b32 v7, v12, v7, s[44:45]
s_lshl_b32 s46, s34, 10
s_add_u32 s46, s46, {WS_F}               ; s46 = fast flag base of the group
s_lshl_b32 s47, s36, 7
; --- table write address, zero pads
v_mul_u32_u24 v4, {E_CH}, v4
v_lshl_add_u32 v8, v5, 5, v4
v_and_b32 v5, 31, v0
v_lshl_add_u32 v4, v5, 2, v4
v_mov_b32 v6, 0
ds_write_b32 v4, v6
v_lshlrev_b32 v4, 2, v0
ds_write_b32 v4, v6 offset:{U_B - 1024}
v_and_b32 v4, 60, v4
v_add_u32 v4, {S_B}, v4
ds_write_b32 v4, v6
; --- transposition image addresses
v_mul_u32_u24 v9, 1040, v2
v_lshl_add_u32 v10, v1, 2, v9
v_xor_b32 v4, 3, v1
v_lshl_add_u32 v9, v4, 2, v9
v_add_u32 v9, {T_B}, v9
v_add_u32 v10, {T_B}, v10
s_and_b32 s48, s35, 3
v_xor_b32 v4, s48, v14
v_and_b32 v5, 1, v4
v_lshlrev_b32 v5, 7, v5                  ; ch*128
v_and_b32 v4, 2, v4
v_lshl_add_u32 v5, v4, 3, v5             ; + parity*16
v_and_b32 v4, 12, v14
v_lshl_add_u32 v5, v4, 3, v5             ; + xl*32
v_lshrrev_b32 v4, 4, v14
v_lshl_add_u32 v5, v4, 8, v5             ; + (L>>4)*256
s_mul_i32 s48, s36, 2080
v_add_u32 v11, s48, v5                   ; v11 = image re-read address (z=1: +1040)
s_lshl_b32 s48, s34, 18
s_lshl_b32 s49, s36, 16
s_add_u32 s48, s48, s49
s_lshl_b32 s49, s35, 8
s_add_u32 s48, s48, s49
s_add_u32 s49, s48, 32768
s_mov_b32 s50, 0x05040100
s_mov_b32 s51, 0x07060302
s_getreg_b32 s52, hwreg(HW_REG_XCC_ID, 0, 4)
v_lshlrev_b32 v13, 6, v2
v_add_u32 v13, {W_B}, v13
""")
if FORCE_SLOW: a("s_and_b32 s52, s35, 1")
if TOUCH == "v": touch()
stamp()
a(f"""
s_barrier
global_load_dwordx4 {vr(H,4)}, v7, s[12:13] offset:-8
global_load_dwordx4 {vr(H+4,4)}, v12, s[12:13] offset:1016
global_load_dwordx4 {vr(H+8,4)}, v12, s[12:13] offset:2040
global_load_dwordx4 {vr(H+12,4)}, v12, s[12:13] offset:3064
ds_read_b128 {vr(WT,4)}, v13
ds_read_b128 {vr(WT+4,4)}, v13 offset:16
ds_read_b128 {vr(WT+8,4)}, v13 offset:32
ds_read_b128 {vr(WT+12,4)}, v13 offset:48
v_lshlrev_b32 v13, 4, v2
v_add_u32 v13, {W_B + 512}, v13
ds_read_b128 {vr(DD,4)}, v13
v_and_b32 v5, 15, v14
v_lshlrev_b32 v5, 4, v5
v_lshl_add_u32 v12, v4, 13, v5           ; v12 = (L>>4)*8192 + 16*(L&15)
""")
if TOUCH == "h": touch()
P = ACC
a(f"s_waitcnt vmcnt({6 + NT})")
stamp()
for p in range(4):
    for e in range(8):
        a(f"v_perm_b32 v{P + 8 * p + e}, v{K + 4 * p + e // 2}, v{K + 4 * (p + 1) + e // 2}, s{50 + (e & 1)}")
a(f"""
s_waitcnt lgkmcnt(0)
s_add_u32 s41, s41, {NONCE_INC}
s_add_u32 s52, s52, s41
""")
KS = AF
for e in range(8):
    a(f"v_dot2_f32_bf16 v{KS + e}, v{P + 16 + e}, v{WT + 2 * e}, 0")
    a(f"v_dot2_f32_bf16 v{KS + 8 + e}, v{P + 24 + e}, v{WT + 2 * e}, 0")
for e in range(8):
    a(f"v_dot2_f32_bf16 v{KS + e}, v{P + e}, v{WT + 2 * e + 1}, v{KS + e}")
    a(f"v_dot2_f32_bf16 v{KS + 8 + e}, v{P + 8 + e}, v{WT + 2 * e + 1}, v{KS + 8 + e}")
a(f"s_waitcnt vmcnt({4 + NT})")
stamp()
VF = AF + 16
for row in range(2):
    for e in range(8):
        src = VV + 4 * row + e // 2
        a(f"v_and_b32 v{VF + 8 * row + e}, 0xffff0000, v{src}" if e & 1 else f"v_lshlrev_b32 v{VF + 8 * row + e}, 16, v{src}")
for e in range(8):
    a(f"v_mul_f32 v{KS + e}, v{KS + e}, v{VF + e}")
    a(f"v_mul_f32 v{KS + 8 + e}, v{KS + 8 + e}, v{VF + 8 + e}")
    a(f"v_cvt_pk_bf16_f32 v{KV + e}, v{KS + 8 + e}, v{KS + e}")
for e in range(0, 8, 2):
    a(f"ds_write2_b32 v9, v{KV + e}, v{KV + e + 1} offset0:{32 * e} offset1:{32 * e + 32}")
UB0 = VV
a(f"""
v_mov_b32 v13, s52
s_lshl_b32 s53, s35, 2
s_waitcnt lgkmcnt(0)
s_barrier
ds_read_b128 {vr(UB0,4)}, v11 offset:{T_B}
ds_read_b128 {vr(UB0+4,4)}, v11 offset:{T_B + 1040}
s_add_u32 s54, s53, s47
v_mov_b32 v4, s54                        ; own fast flag: w*128 + r*4
s_lshr_b32 s54, s35, 3
s_lshl_b32 s54, s54, 7
v_and_b32 v5, 31, v14
v_lshl_add_u32 v5, v5, 2, s54
s_waitcnt lgkmcnt(1)
buffer_store_dwordx4 {vr(UB0,4)}, v12, s[28:31], s48 offen
s_waitcnt lgkmcnt(0)
buffer_store_dwordx4 {vr(UB0+4,4)}, v12, s[28:31], s49 offen
""")
stamp()
if TOUCH == "st": touch()
a(f"s_waitcnt vmcnt({4 if TOUCH in ('h', 'st') else 2})")
stamp()
T = K
a(f"""
v_cndmask_b32 v{H+3}, v{H+3}, v{H+1}, s[44:45]
v_cndmask_b32 v{H+2}, v{H+2}, v{H}, s[44:45]
v_cndmask_b32 v{H+1}, v{H+1}, v6, s[44:45]
v_cndmask_b32 v{H}, v{H}, v6, s[44:45]
""")
for nu in range(4):
    L = H + 4 * nu; t = T + 4 * nu
    a(f"""
v_alignbit_b32 v{t}, v{L+1}, v{L}, 16
v_alignbit_b32 v{t+1}, v{L+2}, v{L+1}, 16
v_mov_b32 v{t+2}, v{L+1}
v_mov_b32 v{t+3}, v{L+2}
v_mov_b32 v{L}, v{t+1}
v_alignbit_b32 v{L+1}, v{L+3}, v{L+2}, 16
ds_write_b128 v8, {vr(t,4)} offset:{E_B0 + 4096 * nu}
ds_write_b128 v8, {vr(L,4)} offset:{E_B0 + 4096 * nu + 16}
""")
a(f"""
s_waitcnt vmcnt({2 if TOUCH == "st" else 0})
s_mov_b64 exec, 1
buffer_store_dword v13, v4, s[28:31], s46 offen
s_mov_b64 exec, -1
buffer_load_dword v6, v5, s[28:31], s46 offen sc1
""")
stamp()
a(f"""
s_lshr_b32 s54, s36, 1                   ; ch
s_and_b32 s55, s36, 1                    ; hf
s_mul_i32 s56, s54, {E_CH}
s_lshl_b32 s57, s55, 10
s_add_u32 s56, s56, s57
v_lshl_add_u32 v8, v14, 3, s56
v_and_b32 v1, 15, v14
v_lshrrev_b32 v2, 4, v14
v_sub_u32 v7, v1, v2
s_lshl_b32 s57, s55, 3
s_sub_u32 s57, 16, s57
v_add_u32 v7, s57, v7                    ; x+16 for a=0
s_add_u32 s57, s54, 2
v_bfe_u32 v9, v7, 2, 2
v_xor_b32 v9, s57, v9
v_lshlrev_b32 v9, 4, v9
v_lshl_add_u32 v{WT}, v7, 6, v9
v_xor_b32 v{WT+1}, 32, v{WT}
v_add_u32 v7, -4, v7
v_bfe_u32 v9, v7, 2, 2
v_xor_b32 v9, s57, v9
v_lshlrev_b32 v9, 4, v9
v_lshl_add_u32 v{WT+2}, v7, 6, v9
v_xor_b32 v{WT+3}, 32, v{WT+2}
s_lshl_b32 s57, s36, 11
v_lshl_add_u32 v7, v14, 4, s57           ; v7 = w*2048 + 16*l
s_add_u32 s57, s57, {U_B}
s_mov_b32 m0, s57
s_mov_b32 s58, s42
s_mov_b32 s59, 0
s_waitcnt lgkmcnt(0)
s_barrier
""")
def afrag(kp, j): return AF + 32 * kp + 4 * j
def aread(kp):
    for j in range(8):
        off = E_B0 - 96 + 2048 * j + 512 * (kp >> 1) + 64 * (kp & 1)
        a(f"ds_read_b64 {vr(afrag(kp, j), 2)}, v8 offset:{off}")
        a(f"ds_read_b64 {vr(afrag(kp, j) + 2, 2)}, v8 offset:{off + 32}")
aread(0)
a(f"""
s_waitcnt vmcnt(0)
v_cmp_ne_u32 vcc, s52, v6
s_cbranch_vccnz L_A_poll1
L_A_go1:
buffer_load_dwordx4 v7, s[28:31], s58 offen sc1 lds
buffer_load_dwordx4 v7, s[28:31], s58 offen offset:1024 sc1 lds
""")
stamp()
aread(1); aread(2); aread(3)
a("""
s_waitcnt vmcnt(0)
s_barrier
""")
stamp()
NB = 7
BR = [16, 20, 24, 28, 32, 36, 40]
seq = [(kp, m) for kp in range(4) for m in range(8)]
def bread(i):
    kp, m = seq[i]
    a(f"ds_read_b128 {vr(BR[i % NB], 4)}, v{WT + kp} offset:{U_B - 1024 + 1024 * m}")
PF = 5
for i in range(PF): bread(i)
a(f"""
global_load_dwordx4 {vr(Q,4)}, v3, s[4:5]
global_load_dwordx4 {vr(Q+4,4)}, v3, s[4:5] offset:1024
v_and_b32 v7, 0x3ff, v3
v_lshlrev_b32 v3, 1, v3
v_sub_u32 v3, v3, v7
s_mov_b64 exec, 1
global_load_dword v15, v3, s[20:21]
s_mov_b64 exec, -1
""")
for i, (kp, m) in enumerate(seq):
    a(f"s_waitcnt lgkmcnt({min(PF - 1, len(seq) - 1 - i)})")
    for j in range(8 - m):
        c = m + j
        srcc = "0" if i == 0 else vr(ACC + 4 * c, 4)
        a(f"v_mfma_f32_16x16x32_bf16 {vr(ACC + 4 * c, 4)}, {vr(afrag(kp, j), 4)}, {vr(BR[i % NB], 4)}, {srcc}")
        if j == 0 and i + PF < len(seq): bread(i + PF)
stamp()
Y = 16; RD = 32
a(f"""
s_lshl_b32 s57, s36, 12
v_lshl_add_u32 v9, v14, 4, s57
v_xor_b32 v11, 0x1000, v9
; y store address: 256*r + 128*ch + 32*(n&3) + 16*(row>>1), r = 4*chunk + (n>>2), chunk = 4hf + 2z + (row&1)
v_and_b32 v4, 3, v1
v_lshlrev_b32 v4, 5, v4
v_lshrrev_b32 v5, 2, v1
v_lshl_add_u32 v4, v5, 8, v4
v_and_b32 v5, 1, v2
v_lshl_add_u32 v4, v5, 10, v4
v_lshrrev_b32 v5, 1, v2
v_lshl_add_u32 v4, v5, 4, v4
s_lshl_b32 s57, s36, 2
s_add_u32 s57, s57, {S_B}
v_mov_b32 v7, s57
v_xor_b32 v8, 4, v7
s_cmp_eq_u32 s55, 0
s_cbranch_scc0 L_A_red1
""")
def red(send, keep):
    for z in range(4): a(f"ds_write_b128 v9, {vr(ACC + 4 * (send + z), 4)} offset:{R_B + 1024 * z}")
    a(f"ds_write_b32 v7, v7\nL_A_rs{send}:\nds_read_b32 v6, v8")
    for z in range(4): a(f"ds_read_b128 {vr(RD + 4 * z, 4)}, v11 offset:{R_B + 1024 * z}")
    a(f"s_waitcnt lgkmcnt(4)\nv_cmp_eq_u32 vcc, 0, v6\ns_cbranch_vccnz L_A_rs{send}")
    for z in range(4):
        a(f"s_waitcnt lgkmcnt({3 - z})")
        for i in range(4): a(f"v_add_f32 v{RD + 4 * z + i}, v{RD + 4 * z + i}, v{ACC + 4 * (keep + z) + i}")
red(4, 0)
a("s_branch L_A_red2\nL_A_red1:")
red(0, 4)
a("L_A_red2:")
for z in range(4):
    a(f"v_cvt_pk_bf16_f32 v{Y + 2 * z}, v{RD + 4 * z}, v{RD + 4 * z + 1}")
    a(f"v_cvt_pk_bf16_f32 v{Y + 2 * z + 1}, v{RD + 4 * z + 2}, v{RD + 4 * z + 3}")
a(f"""
s_lshl_b32 s56, s55, 12
s_lshl_b32 s57, s54, 7
s_add_u32 s56, s56, s57
s_add_u32 s56, s56, s42
v_permlane16_swap_b32 v{Y}, v{Y+2}
v_permlane16_swap_b32 v{Y+1}, v{Y+3}
v_permlane16_swap_b32 v{Y+4}, v{Y+6}
v_permlane16_swap_b32 v{Y+5}, v{Y+7}
s_cmp_lg_u32 s59, 0
s_cbranch_scc1 L_A_slow2
buffer_store_dwordx4 {vr(Y,4)}, v4, s[28:31], s56 offen
buffer_store_dwordx4 {vr(Y+4,4)}, v4, s[28:31], s56 offen offset:2048
L_A_st2:
""")
stamp()
QF, ZQ, DF = AF, AF + 16, AF + 32
a(f"""
s_lshl_b32 s56, s55, 8
s_lshl_b32 s57, s35, 3
s_add_u32 s56, s56, s57
s_lshl_b32 s57, s54, 2
s_add_u32 s56, s56, s57
v_mov_b32 v4, s56
s_lshr_b32 s56, s35, 4
s_lshl_b32 s56, s56, 8
s_lshl_b32 s57, s36, 6
s_add_u32 s56, s56, s57
v_lshl_add_u32 v5, v1, 2, s56
s_add_u32 s46, s46, {F_2}
s_mul_i32 s57, s36, 2080
s_add_u32 s57, s57, {T_B}
s_mov_b32 m0, s57
s_waitcnt vmcnt(2)
""")
for e in range(8):
    src = DD + e // 2
    a(f"v_and_b32 v{DF + e}, 0xffff0000, v{src}" if e & 1 else f"v_lshlrev_b32 v{DF + e}, 16, v{src}")
for row in range(2):
    for e in range(8):
        src = Q + 4 * row + e // 2
        a(f"v_and_b32 v{QF + 8 * row + e}, 0xffff0000, v{src}" if e & 1 else f"v_lshlrev_b32 v{QF + 8 * row + e}, 16, v{src}")
for e in range(8):
    a(f"v_and_b32 v{ZQ + e}, 0xffff0000, v{KV + e}")
    a(f"v_lshlrev_b32 v{ZQ + 8 + e}, 16, v{KV + e}")
a(f"""
s_waitcnt vmcnt(0)
s_mov_b64 exec, 1
s_cmp_lg_u32 s59, 0
s_cbranch_scc1 L_A_slowf2
buffer_store_dword v13, v4, s[28:31], s46 offen
L_A_f2:
s_mov_b64 exec, -1
buffer_load_dword v6, v5, s[28:31], s46 offen sc1
""")
stamp()
for i in range(16):
    a(f"v_mul_f32 v{ZQ + i}, v{ZQ + i}, v{DF + (i & 7)}")
for i in range(16):
    a(f"v_mul_f32 v{ZQ + i}, v{ZQ + i}, v{QF + i}")
a(f"""
s_waitcnt vmcnt(0)
v_cmp_ne_u32 vcc, v13, v6
s_cbranch_vccnz L_A_poll2
L_A_go2:
buffer_load_dwordx4 v12, s[28:31], s48 offen sc1 lds
s_add_u32 s57, s57, 1040
s_mov_b32 m0, s57
v_mov_b32 v8, {S_B}
buffer_load_dwordx4 v12, s[28:31], s49 offen sc1 lds
""")
stamp()
YD, YF, O = 16, 24, 40
a(f"""
s_waitcnt vmcnt(0)
ds_write_b32 v7, v7 offset:16
L_A_ys:
ds_read_b128 {vr(O,4)}, v8 offset:16
""")
for e in range(0, 8, 2):
    a(f"ds_read2_b32 {vr(YD + e, 2)}, v10 offset0:{32 * e} offset1:{32 * e + 32}")
a(f"""
s_waitcnt lgkmcnt(4)
v_min3_u32 v{O}, v{O}, v{O+1}, v{O+2}
v_min_u32 v{O}, v{O}, v{O+3}
v_cmp_eq_u32 vcc, 0, v{O}
s_cbranch_vccnz L_A_ys
""")
stamp()
for e in range(0, 8, 2):
    a(f"s_waitcnt lgkmcnt({3 - e // 2})")
    for ee in (e, e + 1):
        a(f"v_lshlrev_b32 v{YF + ee}, 16, v{YD + ee}")
        a(f"v_and_b32 v{YF + 8 + ee}, 0xffff0000, v{YD + ee}")
        a(f"v_fmac_f32 v{ZQ + ee}, v{QF + ee}, v{YF + ee}")
        a(f"v_fmac_f32 v{ZQ + 8 + ee}, v{QF + 8 + ee}, v{YF + 8 + ee}")
    a(f"v_cvt_pk_bf16_f32 v{O + e // 2}, v{ZQ + e}, v{ZQ + e + 1}")
    a(f"v_cvt_pk_bf16_f32 v{O + 4 + e // 2}, v{ZQ + 8 + e}, v{ZQ + 8 + e + 1}")
a(f"""
global_store_dwordx4 v3, {vr(O,4)}, s[20:21]{OUTF}
global_store_dwordx4 v3, {vr(O+4,4)}, s[20:21] offset:2048{OUTF}
L_A_end:
""")
if STAMPS:
    stamp(); a("s_waitcnt vmcnt(0)"); stamp(); stamps_out()
probe_end()
a("s_endpgm")

a(f"""
L_A_poll1:
s_mov_b32 s60, 0
L_A_poll1a:
buffer_load_dword v6, v5, s[28:31], s46 offen sc1
s_add_u32 s60, s60, 1
s_waitcnt vmcnt(0)
v_cmp_ne_u32 vcc, s52, v6
s_cbranch_vccz L_A_go1
s_and_b32 s61, s60, 15
s_cbranch_scc1 L_A_poll1a
s_add_u32 s61, s38, {WS_F + F_HELLO}
v_mov_b32 v9, s53
s_mov_b64 exec, 1
buffer_store_dword v13, v9, s[28:31], s61 offen sc1
s_mov_b64 exec, -1
v_and_b32 v9, 31, v14
v_lshlrev_b32 v9, 2, v9
buffer_load_dword v6, v9, s[28:31], s61 offen sc1
s_waitcnt vmcnt(0)
v_cmp_ne_u32 vcc, s52, v6
v_subrev_u32 v6, s41, v6
v_cmp_gt_u32 s[32:33], 16, v6
s_and_b64 vcc, vcc, s[32:33]
s_cbranch_vccnz L_A_slow1
s_cmp_lt_u32 s60, {SPIN_MAX}
s_cbranch_scc1 L_A_poll1a
s_branch L_A_go1
L_A_slow1:
s_mov_b32 s59, 1
{"s_sleep 127" + chr(10) + "s_sleep 127" + chr(10) + "s_sleep 127" + chr(10) + "s_sleep 127" + chr(10) + "s_sleep 127" if SLOWPAD else ""}
s_add_u32 s48, s48, {WS_U2}
s_add_u32 s49, s49, {WS_U2}
buffer_store_dwordx4 {vr(UB0,4)}, v12, s[28:31], s48 offen sc1
buffer_store_dwordx4 {vr(UB0+4,4)}, v12, s[28:31], s49 offen sc1
s_add_u32 s48, s48, {WS_Y2 - WS_U2}
s_add_u32 s49, s49, {WS_Y2 - WS_U2}
s_add_u32 s58, s42, {WS_U2}
s_add_u32 s42, s42, {WS_Y2}
s_add_u32 s46, s46, {F_SLOW}
v_mov_b32 v13, s41
s_waitcnt vmcnt(0)
s_mov_b64 exec, 1
buffer_store_dword v13, v4, s[28:31], s46 offen sc1
s_mov_b64 exec, -1
s_mov_b32 s60, 0
L_A_poll1s:
buffer_load_dword v6, v5, s[28:31], s46 offen sc1
s_add_u32 s60, s60, 1
s_waitcnt vmcnt(0)
v_cmp_ne_u32 vcc, s41, v6
s_cbranch_vccz L_A_go1
s_cmp_lt_u32 s60, {SPIN_MAX}
s_cbranch_scc1 L_A_poll1s
s_branch L_A_go1
L_A_slow2:
buffer_store_dwordx4 {vr(Y,4)}, v4, s[28:31], s56 offen sc1
buffer_store_dwordx4 {vr(Y+4,4)}, v4, s[28:31], s56 offen offset:2048 sc1
s_branch L_A_st2
L_A_slowf2:
buffer_store_dword v13, v4, s[28:31], s46 offen sc1
s_branch L_A_f2
L_A_poll2:
s_mov_b32 s60, 0
L_A_poll2a:
buffer_load_dword v6, v5, s[28:31], s46 offen sc1
s_add_u32 s60, s60, 1
s_waitcnt vmcnt(0)
v_cmp_ne_u32 vcc, v13, v6
s_cbranch_vccz L_A_go2
s_cmp_lt_u32 s60, {SPIN_MAX}
s_cbranch_scc1 L_A_poll2a
s_branch L_A_go2
""")

nstamp[0] = 1; role[0] = "B"
F1, XF, G0, GP = 16, 48, 80, 96
a(f"""
L_B:
s_sub_u32 s36, s36, 4
v_and_b32 v0, 255, v0
s_and_b32 s37, s35, 1
s_lshl_b32 s38, s34, 1
s_add_u32 s37, s37, s38                  ; db
s_lshr_b32 s38, s35, 1                   ; s2
s_lshl_b32 s39, s38, 10
s_lshl_b32 s42, s37, 6
s_add_u32 s39, s39, s42
s_lshl_b32 s42, s36, 19
s_add_u32 s39, s39, s42
v_lshrrev_b32 v1, 2, v14
v_and_b32 v2, 3, v14
v_lshlrev_b32 v3, 14, v1
v_lshl_add_u32 v3, v2, 4, v3
v_add_u32 v3, s39, v3
v_add_u32 v4, 0x40000, v3
s_lshl_b32 s42, s36, 11
s_add_u32 s42, s42, {X_B}
s_mov_b32 m0, s42
s_add_u32 s42, s42, 1024
s_lshl_b32 s43, s34, 9
s_lshl_b32 s44, s36, 7
s_add_u32 s43, s43, s44
v_lshl_add_u32 v5, v14, 4, s43
s_lshr_b32 s43, s43, 2
v_lshl_add_u32 v6, v14, 4, s43
s_lshr_b32 s45, s44, 2
s_add_u32 s44, s44, {W_B}
s_add_u32 s45, s45, {W_B + 512}
s_waitcnt lgkmcnt(0)
{"s_add_u32 s22, s22, %d" % WSOFF + chr(10) + "s_addc_u32 s23, s23, 0" if WSOFF else ""}
global_load_lds_dwordx4 v3, s[16:17]
s_mov_b32 m0, s42
s_load_dword s41, s[22:23], s40
global_load_lds_dwordx4 v4, s[16:17]
s_mov_b32 m0, s44
s_mov_b64 exec, 0xff
global_load_lds_dwordx4 v5, s[10:11]
s_mov_b32 m0, s45
s_mov_b64 exec, 3
global_load_lds_dwordx4 v6, s[14:15]
s_mov_b64 exec, -1
s_barrier
s_mov_b32 s28, s22
s_mov_b32 s29, s23
s_mov_b32 s24, s20
s_mov_b32 s25, s21
s_mov_b32 s26, 0x400000
; G store address: slot*32768 + (db*16+s2)*128 + 4*(l&31), slot = 16w + 4j + 2h + rb
v_and_b32 v5, 31, v14
v_lshrrev_b32 v6, 5, v14
v_lshlrev_b32 v7, 16, v6
v_lshl_add_u32 v7, v5, 2, v7
s_lshl_b32 s43, s37, 4
s_add_u32 s43, s43, s38
s_lshl_b32 s44, s43, 7
s_lshl_b32 s45, s36, 19
s_add_u32 s44, s44, s45
s_add_u32 s44, s44, {WS_G}
s_lshl_b32 s45, s36, 5
v_add_u32 v8, s45, v5
v_lshrrev_b32 v9, 1, v8                  ; frequency
v_and_b32 v10, 1, v8
v_cmp_eq_u32 vcc, 1, v8
v_cvt_f32_u32 v11, v10
v_mul_f32 v11, 0x3e800000, v11           ; phase
v_and_b32 v12, 1, v9
v_cndmask_b32 v9, v9, 64, vcc
v_cndmask_b32 v11, v11, 0, vcc
v_mul_u32_u24 v12, 0x8000, v12
v_lshl_or_b32 v12, v12, 16, v12
v_cvt_f32_u32 v9, v9
v_mul_f32 v9, 0x3c000000, v9
v_cvt_f32_u32 v6, v6
v_mul_f32 v6, 4.0, v6
v_fmac_f32 v11, v9, v6
""")
stamp()
TMP = XF
for kap in range(4):
    for eps in range(8):
        c = 16 * kap + 8 * (eps >> 2) + (eps & 3)
        a(f"v_fmamk_f32 v{TMP + eps}, v9, {f2u(c)}, v11")
    for eps in range(8): a(f"v_cos_f32 v{TMP + eps}, v{TMP + eps}")
    for i in range(4): a(f"v_cvt_pk_bf16_f32 v{F1 + 4 * kap + i}, v{TMP + 2 * i}, v{TMP + 2 * i + 1}")
    for i in range(4): a(f"v_xor_b32 v{F1 + 16 + 4 * kap + i}, v12, v{F1 + 4 * kap + i}")
a(f"""
v_lshrrev_b32 v5, 5, v14
v_lshlrev_b32 v5, 8, v5
v_and_b32 v6, 3, v1
v_lshl_add_u32 v5, v6, 6, v5
v_bfe_u32 v6, v14, 4, 1
v_lshl_add_u32 v5, v6, 5, v5
v_lshl_add_u32 v5, v2, 3, v5
v_add_u32 v5, {X_B}, v5
""")
stamp()
a(f"""
s_waitcnt vmcnt(0) lgkmcnt(0)
s_barrier
""")
stamp()
for i in range(16): a(f"ds_read_b64_tr_b16 {vr(XF + 2 * i, 2)}, v5 offset:{512 * i}")
a(f"s_add_u32 s41, s41, {NONCE_INC}")
for kap in range(8):
    a(f"s_waitcnt lgkmcnt({14 - 2 * kap})")
    a(f"v_mfma_f32_32x32x16_bf16 {vr(G0,16)}, {vr(F1 + 4 * kap, 4)}, {vr(XF + 4 * kap, 4)}, {'0' if kap == 0 else vr(G0,16)}")
a(f"""
s_lshl_b32 s46, s34, 3
s_lshr_b32 s47, s35, 2
s_add_u32 s46, s46, s47                  ; slot
s_and_b32 s47, s35, 1
s_bfe_u32 s48, s35, 0x10001              ; class
s_sub_u32 s49, 128, s46
s_cmp_eq_u32 s46, 0
s_cselect_b32 s49, 64, s49
s_cmp_eq_u32 s48, 0
s_cselect_b32 s49, s46, s49
s_lshl_b32 s47, s47, 10
s_add_u32 s49, s49, s47
v_mov_b32 v13, s41
""")
for j in range(4):
    for rb in range(2):
        a(f"v_cvt_pk_bf16_f32 v{GP + 2 * j + rb}, v{G0 + 4 * j + 2 * rb}, v{G0 + 4 * j + 2 * rb + 1}")
        a(f"buffer_store_dword v{GP + 2 * j + rb}, v7, s[28:31], s44 offen sc1")
        a(f"s_add_u32 s44, s44, {32768 if rb == 0 else 3 * 32768}")
stamp()
FA, FB, FC, TW = 16, 20, 28, 44
TMP = 64
a(f"""
v_and_b32 v1, 15, v14                    ; n / m
v_lshrrev_b32 v2, 4, v14                 ; kg
v_cvt_f32_u32 v3, v2
v_mul_f32 v3, 4.0, v3                    ; 4kg
v_cvt_f32_u32 v4, v1
; stage a: amp[pi] * cos(t*s2/2048 + po/4 + psi[pi])
v_lshrrev_b32 v5, 1, v1
v_lshl_add_u32 v5, v5, 7, s49
v_cvt_f32_u32 v5, v5
v_mul_f32 v5, 0x3a000000, v5             ; t/2048
v_and_b32 v6, 1, v1
v_cvt_f32_u32 v6, v6
v_mul_f32 v6, 0x3e800000, v6
v_fmac_f32 v6, v5, v3
s_cmp_eq_u32 s48, 0
s_cselect_b32 s50, 0xbe800000, 0x3e800000
s_cselect_b32 s51, 0x0000ffff, 0xffff0000
s_cmp_eq_u32 s46, 0
s_cselect_b32 s50, 0, s50
s_cselect_b32 s51, s51, -1
""".replace("s_cselect_b32 s50, 0xbe800000, 0x3e800000", "s_mov_b32 s50, 0x3e800000\ns_cselect_b32 s50, 0xbe800000, s50")
   .replace("s_cselect_b32 s51, 0x0000ffff, 0xffff0000", "s_mov_b32 s51, 0xffff0000\ns_cselect_b32 s51, 0x0000ffff, s51"))
for i in range(4):
    a(f"v_fmamk_f32 v{TMP + 2 * i}, v5, {f2u(i)}, v6")
    a(f"v_add_f32 v{TMP + 2 * i + 1}, s50, v{TMP + 2 * i}")
for i in range(8): a(f"v_cos_f32 v{TMP + i}, v{TMP + i}")
for i in range(4):
    a(f"v_cvt_pk_bf16_f32 v{FA + i}, v{TMP + 2 * i}, v{TMP + 2 * i + 1}")
for i in range(4): a(f"v_and_b32 v{FA + i}, s51, v{FA + i}")
a("v_mul_f32 v5, 0x3d800000, v4\nv_mul_f32 v6, v5, v3")
for i in range(4): a(f"v_fmamk_f32 v{TMP + i}, v5, {f2u(i)}, v6")
for i in range(4):
    a(f"v_sin_f32 v{TMP + 4 + i}, v{TMP + i}")
    a(f"v_cos_f32 v{TMP + i}, v{TMP + i}")
for i in range(4):
    a(f"v_cvt_pk_bf16_f32 v{FB + i}, v{TMP + i}, v{TMP + 4 + i}")
    a(f"v_cvt_pk_bf16_f32 v{FB + 4 + i}, -v{TMP + 4 + i}, v{TMP + i}")
a(f"""
s_lshl_b32 s50, s36, 10
s_lshl_b32 s51, s43, 2
s_add_u32 s50, s50, s51
v_mov_b32 v8, s50
s_lshr_b32 s50, s46, 4
s_lshl_b32 s50, s50, 10
s_lshl_b32 s51, s36, 8
s_add_u32 s50, s50, s51
v_lshl_add_u32 v9, v14, 2, s50
s_mov_b32 s52, {WS_F + F_B}
""")
a("v_mul_f32 v5, 0x3b000000, v4\nv_mul_f32 v6, v5, v3")
for mt in range(2):
    for r in range(4): a(f"v_fmamk_f32 v{TW + 4 * mt + r}, v5, {f2u(16 * mt + r)}, v6")
for i in range(8):
    a(f"v_sin_f32 v{TW + 8 + i}, v{TW + i}")
    a(f"v_cos_f32 v{TW + i}, v{TW + i}")
stamp()
a(f"""
s_barrier
s_barrier
s_barrier
s_waitcnt vmcnt(0)
s_mov_b64 exec, 1
buffer_store_dword v13, v8, s[28:31], s52 offen sc1
s_mov_b64 exec, -1
buffer_load_dword v10, v9, s[28:31], s52 offen sc1
""")
stamp()
for nt in range(2):
    a(f"v_fmaak_f32 v5, v4, v{TMP + 8}, {f2u(0.5 * nt)}".replace(f"v{TMP + 8}", "v11") if False else
      (f"v_mul_f32 v5, 0x3d000000, v4" if nt == 0 else "v_add_f32 v5, 0.5, v5"))
    a("v_mul_f32 v6, v5, v3")
    for mt in range(2):
        for r in range(4): a(f"v_fmamk_f32 v{TMP + r}, v5, {f2u(16 * mt + r)}, v6")
        for r in range(4):
            a(f"v_sin_f32 v{TMP + 4 + r}, v{TMP + r}")
            a(f"v_cos_f32 v{TMP + r}, v{TMP + r}")
        for r in range(4): a(f"v_cvt_pk_bf16_f32 v{FC + 8 * nt + 4 * mt + r}, v{TMP + r}, v{TMP + 4 + r}")
GL, VA = 64, 96
a(f"""
v_and_b32 v3, 7, v1
v_lshrrev_b32 v4, 3, v1
v_lshlrev_b32 v5, 4, v3
v_lshl_add_u32 v5, v2, 9, v5
v_lshl_add_u32 v5, v4, 12, v5
s_lshl_b32 s50, s46, 15
s_lshl_b32 s51, s36, 13
s_add_u32 s50, s50, s51
s_add_u32 s50, s50, {WS_G}
v_xor_b32 v6, s36, v3
v_lshlrev_b32 v6, 4, v6
v_lshl_add_u32 v6, v3, 8, v6
v_lshl_add_u32 v6, v4, 3, v6
v_lshl_add_u32 v6, v2, 12, v6
v_add_u32 v6, {V_B}, v6
v_xor_b32 v7, 64, v6
v_lshrrev_b32 v3, 2, v1
v_xor_b32 v3, v3, v2
v_lshlrev_b32 v3, 4, v3
v_lshl_add_u32 v3, v1, 6, v3
s_lshl_b32 s51, s36, 12
s_add_u32 s51, s51, {V_B}
v_add_u32 v3, s51, v3
v_xor_b32 v4, 64, v3
s_lshl_b32 s51, s36, 2
s_add_u32 s51, s51, {S_B}
v_mov_b32 v8, s51
v_and_b32 v11, 1, v2
v_lshlrev_b32 v11, 9, v11
v_lshl_add_u32 v11, v1, 5, v11
v_lshrrev_b32 v12, 1, v2
v_lshl_add_u32 v11, v12, 4, v11
s_lshl_b32 s53, s36, 8
s_add_u32 s53, s53, s49
s_lshl_b32 s53, s53, 11
s_add_u32 s54, s53, 0x40000
s_waitcnt vmcnt(0) lgkmcnt(0)
v_cmp_ne_u32 vcc, s41, v10
s_cbranch_vccnz L_B_poll
L_B_go:
""")
for g in range(2):
    for i in range(4):
        a(f"buffer_load_dwordx4 {vr(GL + 16 * g + 4 * i, 4)}, v5, s[28:31], s50 offen offset:{2048 * g + 128 * i} sc1")
stamp()
for g in range(2):
    a(f"s_waitcnt vmcnt({4 - 4 * g})")
    b = GL + 16 * g
    for i in range(4):
        for e in range(i + 1, 4): a(f"v_swap_b32 v{b + 4 * i + e}, v{b + 4 * e + i}")
    for e in range(4):
        a(f"v_mfma_f32_16x16x32_bf16 {vr(VA + 16 * g + 4 * e, 4)}, {vr(FA,4)}, {vr(b + 4 * e, 4)}, 0")
stamp()
VP = 64
for e in range(4):
    for rb in range(2):
        for g in range(2):
            s = VA + 16 * g + 4 * e + 2 * rb
            a(f"v_cvt_pk_bf16_f32 v{VP + 4 * e + 2 * rb + g}, v{s}, v{s + 1}")
        a(f"ds_write_b64 v{7 if e & 1 else 6}, {vr(VP + 4 * e + 2 * rb, 2)} offset:{2048 * rb + 128 * (e >> 1)}")
VR, W = 80, 96
a(f"""
ds_write_b32 v8, v8 offset:32
v_mov_b32 v8, {S_B}
L_B_vs:
ds_read_b128 {vr(60,4)}, v8 offset:32
""")
for z in range(2):
    for mt in range(2):
        a(f"ds_read_b128 {vr(VR + 8 * z + 4 * mt, 4)}, v{4 if mt else 3} offset:{2048 * z + 1024 * mt}")
a(f"""
s_waitcnt lgkmcnt(4)
v_min3_u32 v60, v60, v61, v62
v_min_u32 v60, v60, v63
v_cmp_eq_u32 vcc, 0, v60
s_cbranch_vccnz L_B_vs
""")
stamp()
for z in range(2):
    for mt in range(2):
        a(f"s_waitcnt lgkmcnt({3 - 2 * z - mt})")
        for po in range(2):
            a(f"v_mfma_f32_16x16x32_bf16 {vr(W + 16 * z + 8 * mt + 4 * po, 4)}, {vr(VR + 8 * z + 4 * mt, 4)}, {vr(FB + 4 * po, 4)}, 0")
U, UT, YA, YP = 64, 160, 128, 144
for z in range(2):
    for mt in range(2):
        wr = W + 16 * z + 8 * mt; wi = wr + 4; c = TW + 4 * mt; s = TW + 8 + 4 * mt
        for r in range(4): a(f"v_mul_f32 v{UT + r}, v{c + r}, v{wr + r}")
        for r in range(4): a(f"v_mul_f32 v{UT + 4 + r}, v{c + r}, v{wi + r}")
        for r in range(4): a(f"v_fmac_f32 v{UT + r}, v{s + r}, v{wi + r}")
        for r in range(4): a(f"v_fma_f32 v{UT + 4 + r}, -v{s + r}, v{wr + r}, v{UT + 4 + r}")
        for r in range(4): a(f"v_cvt_pk_bf16_f32 v{U + 8 * z + 4 * mt + r}, v{UT + r}, v{UT + 4 + r}")
        for nt in range(2):
            d = vr(YA + 8 * z + 4 * nt, 4)
            a(f"v_mfma_f32_16x16x32_bf16 {d}, {vr(U + 8 * z + 4 * mt, 4)}, {vr(FC + 8 * nt + 4 * mt, 4)}, {'0' if mt == 0 else d}")
for z in range(2):
    for nt in range(2):
        for j in range(2):
            s = YA + 8 * z + 4 * nt + 2 * j
            a(f"v_cvt_pk_bf16_f32 v{YP + 4 * z + 2 * nt + j}, v{s}, v{s + 1}")
    a(f"v_permlane16_swap_b32 v{YP + 4 * z}, v{YP + 4 * z + 2}")
    a(f"v_permlane16_swap_b32 v{YP + 4 * z + 1}, v{YP + 4 * z + 3}")
    a(f"buffer_store_dwordx4 {vr(YP + 4 * z, 4)}, v11, s[24:27], s{53 + z} offen offset:1024{OUTF}")
a(f"""
s_or_b32 s56, s2, s36
s_cbranch_scc1 L_B_end
v_mov_b32 v5, s40
s_mov_b64 exec, 1
buffer_store_dword v13, v5, s[28:31], 0 offen
s_mov_b64 exec, -1
L_B_end:
""")
if STAMPS:
    stamp(); a("s_waitcnt vmcnt(0)"); stamp(); stamps_out()
probe_end()
a(f"""
L_end:
s_endpgm
L_B_poll:
s_mov_b32 s60, 0
L_B_polla:
buffer_load_dword v10, v9, s[28:31], s52 offen sc1
s_add_u32 s60, s60, 1
s_waitcnt vmcnt(0)
v_cmp_ne_u32 vcc, s41, v10
s_cbranch_vccz L_B_go
s_cmp_lt_u32 s60, {SPIN_MAX}
s_cbranch_scc1 L_B_polla
s_branch L_B_go
""")

body = a.finish()
ref = open(f"cdna_kernels/{NAME}.s.ref").read().split("\n")
hdr = [l for l in ref if l.startswith(";") and "@launch" not in l]
out = "\n".join(hdr) + f"""
; @launch grid=(256,1,1) block=(512,1,1) lds={LDS_BYTES}
.amdgcn_target "amdgcn-amd-amdhsa--gfx950"
.text
.globl {NAME}_kernel
.p2align 8
.type {NAME}_kernel,@function
""" + body + f""".p2align 8
.fill 1024, 4, 0xbf810000
.section .rodata,"a"
.p2align 6
.amdhsa_kernel {NAME}_kernel
  .amdhsa_next_free_vgpr 256
  .amdhsa_next_free_sgpr 102
  .amdhsa_accum_offset 256
  .amdhsa_group_segment_fixed_size 0
  .amdhsa_kernarg_size 112
  .amdhsa_user_sgpr_count 2
  .amdhsa_user_sgpr_kernarg_segment_ptr 1
  .amdhsa_system_sgpr_workgroup_id_x 1
.end_amdhsa_kernel
"""
dst = [x for x in sys.argv[1:] if not x.startswith("--")]
open(dst[0] if dst else f"cdna_kernels/{NAME}.s", "w").write(out)
print("nops inserted:", a.nops, file=sys.stderr)
```

```python
import sys, struct
from asmlib import Asm
NAME = "concat_heads__ssm_conv_h3__spectral_fnet__prompt"
STAMPS = "--stamps" in sys.argv
FORCE_SLOW = "--slow" in sys.argv
PROBE = [x[8:] for x in sys.argv if x.startswith("--probe=")]
PROBE = PROBE[0].split(",") if PROBE else None
SLOWPAD = "--slowpad" in sys.argv
OUTF = [x[7:] for x in sys.argv if x.startswith("--outf=")]
OUTF = " " + OUTF[0].replace("+", " ") if OUTF else ""
WSOFF = [int(x[8:], 0) for x in sys.argv if x.startswith("--wsoff=")]
WSOFF = WSOFF[0] if WSOFF else 0x10000000 - 0xC00000
TOUCH = [x[8:] for x in sys.argv if x.startswith('--touch=')]
TOUCH = TOUCH[0] if TOUCH else 'h'
TF = ' sc1' + (' nt' if '--nt' in sys.argv else '')
PRE = [x[6:] for x in sys.argv if x.startswith("--pre=")]
PRE = PRE[0].split(",") if PRE else None
CYC = "--cyc" in sys.argv
role = ["A"]

WS_U, WS_G, WS_F, WS_U2, WS_Y2, WS_ST, WS_SIZE = 0x0, 0x200000, 0x400000, 0x600000, 0x800000, 0xA00000, 0xC00000
F_1, F_2, F_HELLO, F_SLOW, F_NONCE, F_B = 0, 512, 8192, 16384, 32768, 40960
NONCE_INC = 0x9E3779B0
E_CH, E_B0 = 16512, 128
U_B = 34048
T_B = 42240
R_B = 50560
S_B = 66944
W_B = S_B + 64
X_B = 67712
V_B = X_B + 8192
LDS_BYTES = V_B + 16384
CODE_MAX = 12288
SPIN_MAX = 1 << 18

def f2u(x): return "0x%08x" % struct.unpack("<I", struct.pack("<f", x))[0]
def vr(a, n=1): return "v%d" % a if n == 1 else "v[%d:%d]" % (a, a + n - 1)

a = Asm()
nstamp = [0]
def probe_end():
    if not PROBE: return
    lab = "L_probe_" + role[0]
    a("s_waitcnt vmcnt(0) lgkmcnt(0)")
    if PROBE[1] == "end" and PROBE[0] == role[0]:
        a(("s_memtime" if CYC else "s_memrealtime") + " s[66:67]\ns_waitcnt lgkmcnt(0)")
    if PROBE[0] == role[0]:
        if CYC: a("s_sub_u32 s66, s66, s70\ns_lshr_b32 s66, s66, 2\ns_add_u32 s66, s66, 3000")
        else: a("s_sub_u32 s66, s66, s62\ns_lshl_b32 s66, s66, 3\ns_add_u32 s66, s66, 3000")
    else:
        a("s_mov_b32 s66, 3000")
    a(f"""{lab}:
s_sleep 4
s_memrealtime s[68:69]
s_waitcnt lgkmcnt(0)
s_sub_u32 s68, s68, s62
s_cmp_lt_u32 s68, s66
s_cbranch_scc1 {lab}""")
def stamp():
    if PROBE:
        i = nstamp[0]; nstamp[0] += 1
        if PROBE[0] == role[0] and PROBE[1] == str(i): a(("s_memtime" if CYC else "s_memrealtime") + " s[66:67]")
    if STAMPS:
        i = nstamp[0]; nstamp[0] += 1
        a(f"s_memtime s[{64 + 2 * i}:{65 + 2 * i}]")
def stamps_out():
    if not STAMPS: return
    n = nstamp[0]
    a("s_waitcnt lgkmcnt(0)")
    a("v_mov_b32 v1, 0")
    a("v_writelane_b32 v1, s62, 0")
    for i in range(n):
        a(f"s_sub_u32 s60, s{64 + 2 * i}, s64")
        a(f"v_writelane_b32 v1, s60, {i + 1}")
    a(f"""
s_lshl_b32 s60, s2, 10
s_add_u32 s60, s60, {WS_ST + (0x40000 if role[0] == "B" else 0)}
v_lshlrev_b32 v2, 2, v0
buffer_store_dword v1, v2, s[28:31], s60 offen
""")

a(f"""
{NAME}_kernel:
s_cmp_ge_u32 s2, 256
s_cbranch_scc1 L_end
s_load_dwordx16 s[4:19], s[0:1], 0
s_load_dwordx2 s[20:21], s[0:1], 88
s_load_dwordx2 s[22:23], s[0:1], 104
""")
if STAMPS or PROBE: a("s_memrealtime s[62:63]")
if CYC: a("s_memtime s[70:71]")
stamp()
if PRE:
    a(f"""
s_lshl_b32 s37, s2, 13
s_add_u32 s37, s37, {PRE[1]}
v_lshl_add_u32 v1, v0, 4, s37
s_waitcnt lgkmcnt(0)
global_load_dwordx4 v[16:19], v1, s[{PRE[0]}:{int(PRE[0])+1}] {PRE[2] if len(PRE) > 2 else ""}
s_waitcnt vmcnt(0)
s_memrealtime s[66:67]
""")
a(f"""
s_getpc_b64 s[32:33]
s_and_b32 s34, s2, 7
s_lshr_b32 s35, s2, 3
v_lshrrev_b32 v1, 6, v0
s_lshl_b32 s37, s35, 7
v_lshl_add_u32 v2, v1, 12, s37
v_readfirstlane_b32 s36, v1
v_min_u32 v2, {CODE_MAX}, v2
global_load_dword v15, v2, s[32:33]
s_mov_b32 s27, 0x20000
s_mov_b32 s30, {WS_SIZE}
s_mov_b32 s31, 0x20000
v_and_b32 v14, 63, v0                    ; lane
s_mov_b32 s40, {WS_F + F_NONCE}
s_cmp_ge_u32 s36, 4
s_cbranch_scc1 L_B
""")

K, VV, WT, H, DD, Q, KV, ACC, AF = 16, 36, 44, 60, 76, 80, 88, 96, 128

def touch():
    a(f"""
v_lshlrev_b32 v15, 5, v0
buffer_load_dword v15, v15, s[28:31], s42 offen{TF}
v_lshlrev_b32 v{AF + 64}, 2, v0
buffer_load_dword v{AF + 64}, v{AF + 64}, s[28:31], s46 offen{TF}
""")
NT = {"h": 2, "v": 2, "st": 0, "no": 0}[TOUCH]
a(f"""
s_setprio 2
v_lshrrev_b32 v1, 3, v0                  ; tp
v_and_b32 v2, 7, v0                      ; q
s_lshl_b32 s37, s35, 16
s_lshl_b32 s38, s34, 7
s_add_u32 s37, s37, s38
v_lshlrev_b32 v3, 11, v1
v_lshl_add_u32 v3, v2, 4, v3
v_add_u32 v3, s37, v3
v_add_u32 v4, 0xfffff400, v3
v_add_u32 v5, 0xfffff800, v3
v_add_u32 v6, 0xfffffc00, v3
s_mov_b32 s26, 0x200000
s_waitcnt lgkmcnt(0)
{"s_add_u32 s22, s22, %d" % WSOFF + chr(10) + "s_addc_u32 s23, s23, 0" if WSOFF else ""}
s_mov_b32 s24, s6
s_mov_b32 s25, s7
s_load_dword s41, s[22:23], s40
buffer_load_dwordx4 {vr(K+12,4)}, v3, s[24:27], 0 offen
buffer_load_dwordx4 {vr(K+16,4)}, v3, s[24:27], 0 offen offset:1024
buffer_load_dwordx4 {vr(K,4)}, v4, s[24:27], 0 offen
buffer_load_dwordx4 {vr(K+4,4)}, v5, s[24:27], 0 offen
buffer_load_dwordx4 {vr(K+8,4)}, v6, s[24:27], 0 offen
s_barrier
global_load_dwordx4 {vr(VV,4)}, v3, s[8:9]
global_load_dwordx4 {vr(VV+4,4)}, v3, s[8:9] offset:1024
s_mov_b32 s28, s22
s_mov_b32 s29, s23
; --- h addresses
s_lshl_b32 s42, s34, 18
s_lshl_b32 s43, s35, 13
s_add_u32 s42, s42, s43
v_lshrrev_b32 v4, 7, v0                  ; ch
v_and_b32 v5, 127, v0                    ; T'
v_lshlrev_b32 v12, 12, v4
v_lshl_add_u32 v12, v5, 3, v12
v_add_u32 v12, s42, v12
v_cmp_eq_u32 s[44:45], 0, v5
v_add_u32 v7, 8, v12
v_cndmask_b32 v7, v12, v7, s[44:45]
s_lshl_b32 s46, s34, 10
s_add_u32 s46, s46, {WS_F}               ; s46 = fast flag base of the group
s_lshl_b32 s47, s36, 7
; --- table write address, zero pads
v_mul_u32_u24 v4, {E_CH}, v4
v_lshl_add_u32 v8, v5, 5, v4
v_and_b32 v5, 31, v0
v_lshl_add_u32 v4, v5, 2, v4
v_mov_b32 v6, 0
ds_write_b32 v4, v6
v_lshlrev_b32 v4, 2, v0
ds_write_b32 v4, v6 offset:{U_B - 1024}
v_and_b32 v4, 60, v4
v_add_u32 v4, {S_B}, v4
ds_write_b32 v4, v6
; --- transposition image addresses
v_mul_u32_u24 v9, 1040, v2
v_lshl_add_u32 v10, v1, 2, v9
v_xor_b32 v4, 3, v1
v_lshl_add_u32 v9, v4, 2, v9
v_add_u32 v9, {T_B}, v9
v_add_u32 v10, {T_B}, v10
s_and_b32 s48, s35, 3
v_xor_b32 v4, s48, v14
v_and_b32 v5, 1, v4
v_lshlrev_b32 v5, 7, v5                  ; ch*128
v_and_b32 v4, 2, v4
v_lshl_add_u32 v5, v4, 3, v5             ; + parity*16
v_and_b32 v4, 12, v14
v_lshl_add_u32 v5, v4, 3, v5             ; + xl*32
v_lshrrev_b32 v4, 4, v14
v_lshl_add_u32 v5, v4, 8, v5             ; + (L>>4)*256
s_mul_i32 s48, s36, 2080
v_add_u32 v11, s48, v5                   ; v11 = image re-read address (z=1: +1040)
s_lshl_b32 s48, s34, 18
s_lshl_b32 s49, s36, 16
s_add_u32 s48, s48, s49
s_lshl_b32 s49, s35, 8
s_add_u32 s48, s48, s49
s_add_u32 s49, s48, 32768
s_mov_b32 s50, 0x05040100
s_mov_b32 s51, 0x07060302
s_getreg_b32 s52, hwreg(HW_REG_XCC_ID, 0, 4)
v_lshlrev_b32 v13, 6, v2
v_add_u32 v13, {W_B}, v13
""")
if FORCE_SLOW: a("s_and_b32 s52, s35, 1")
if TOUCH == "v": touch()
stamp()
a(f"""
s_barrier
global_load_dwordx4 {vr(H,4)}, v7, s[12:13] offset:-8
global_load_dwordx4 {vr(H+4,4)}, v12, s[12:13] offset:1016
global_load_dwordx4 {vr(H+8,4)}, v12, s[12:13] offset:2040
global_load_dwordx4 {vr(H+12,4)}, v12, s[12:13] offset:3064
ds_read_b128 {vr(WT,4)}, v13
ds_read_b128 {vr(WT+4,4)}, v13 offset:16
ds_read_b128 {vr(WT+8,4)}, v13 offset:32
ds_read_b128 {vr(WT+12,4)}, v13 offset:48
v_lshlrev_b32 v13, 4, v2
v_add_u32 v13, {W_B + 512}, v13
ds_read_b128 {vr(DD,4)}, v13
v_and_b32 v5, 15, v14
v_lshlrev_b32 v5, 4, v5
v_lshl_add_u32 v12, v4, 13, v5           ; v12 = (L>>4)*8192 + 16*(L&15)
""")
if TOUCH == "h": touch()
P = ACC
a(f"s_waitcnt vmcnt({6 + NT})")
stamp()
for p in range(4):
    for e in range(8):
        a(f"v_perm_b32 v{P + 8 * p + e}, v{K + 4 * p + e // 2}, v{K + 4 * (p + 1) + e // 2}, s{50 + (e & 1)}")
a(f"""
s_waitcnt lgkmcnt(0)
s_add_u32 s41, s41, {NONCE_INC}
s_add_u32 s52, s52, s41
""")
KS = AF
for e in range(8):
    a(f"v_dot2_f32_bf16 v{KS + e}, v{P + 16 + e}, v{WT + 2 * e}, 0")
    a(f"v_dot2_f32_bf16 v{KS + 8 + e}, v{P + 24 + e}, v{WT + 2 * e}, 0")
for e in range(8):
    a(f"v_dot2_f32_bf16 v{KS + e}, v{P + e}, v{WT + 2 * e + 1}, v{KS + e}")
    a(f"v_dot2_f32_bf16 v{KS + 8 + e}, v{P + 8 + e}, v{WT + 2 * e + 1}, v{KS + 8 + e}")
a(f"s_waitcnt vmcnt({4 + NT})")
stamp()
VF = AF + 16
for row in range(2):
    for e in range(8):
        src = VV + 4 * row + e // 2
        a(f"v_and_b32 v{VF + 8 * row + e}, 0xffff0000, v{src}" if e & 1 else f"v_lshlrev_b32 v{VF + 8 * row + e}, 16, v{src}")
for e in range(8):
    a(f"v_mul_f32 v{KS + e}, v{KS + e}, v{VF + e}")
    a(f"v_mul_f32 v{KS + 8 + e}, v{KS + 8 + e}, v{VF + 8 + e}")
    a(f"v_cvt_pk_bf16_f32 v{KV + e}, v{KS + 8 + e}, v{KS + e}")
for e in range(0, 8, 2):
    a(f"ds_write2_b32 v9, v{KV + e}, v{KV + e + 1} offset0:{32 * e} offset1:{32 * e + 32}")
UB0 = VV
a(f"""
v_mov_b32 v13, s52
s_lshl_b32 s53, s35, 2
s_waitcnt lgkmcnt(0)
s_barrier
ds_read_b128 {vr(UB0,4)}, v11 offset:{T_B}
ds_read_b128 {vr(UB0+4,4)}, v11 offset:{T_B + 1040}
s_add_u32 s54, s53, s47
v_mov_b32 v4, s54                        ; own fast flag: w*128 + r*4
s_lshr_b32 s54, s35, 3
s_lshl_b32 s54, s54, 7
v_and_b32 v5, 31, v14
v_lshl_add_u32 v5, v5, 2, s54
s_waitcnt lgkmcnt(1)
buffer_store_dwordx4 {vr(UB0,4)}, v12, s[28:31], s48 offen
s_waitcnt lgkmcnt(0)
buffer_store_dwordx4 {vr(UB0+4,4)}, v12, s[28:31], s49 offen
""")
stamp()
if TOUCH == "st": touch()
a(f"s_waitcnt vmcnt({4 if TOUCH in ('h', 'st') else 2})")
stamp()
T = K
a(f"""
v_cndmask_b32 v{H+3}, v{H+3}, v{H+1}, s[44:45]
v_cndmask_b32 v{H+2}, v{H+2}, v{H}, s[44:45]
v_cndmask_b32 v{H+1}, v{H+1}, v6, s[44:45]
v_cndmask_b32 v{H}, v{H}, v6, s[44:45]
""")
for nu in range(4):
    L = H + 4 * nu; t = T + 4 * nu
    a(f"""
v_alignbit_b32 v{t}, v{L+1}, v{L}, 16
v_alignbit_b32 v{t+1}, v{L+2}, v{L+1}, 16
v_mov_b32 v{t+2}, v{L+1}
v_mov_b32 v{t+3}, v{L+2}
v_mov_b32 v{L}, v{t+1}
v_alignbit_b32 v{L+1}, v{L+3}, v{L+2}, 16
ds_write_b128 v8, {vr(t,4)} offset:{E_B0 + 4096 * nu}
ds_write_b128 v8, {vr(L,4)} offset:{E_B0 + 4096 * nu + 16}
""")
a(f"""
s_waitcnt vmcnt({2 if TOUCH == "st" else 0})
s_mov_b64 exec, 1
buffer_store_dword v13, v4, s[28:31], s46 offen
s_mov_b64 exec, -1
buffer_load_dword v6, v5, s[28:31], s46 offen sc1
""")
stamp()
a(f"""
s_lshr_b32 s54, s36, 1                   ; ch
s_and_b32 s55, s36, 1                    ; hf
s_mul_i32 s56, s54, {E_CH}
s_lshl_b32 s57, s55, 10
s_add_u32 s56, s56, s57
v_lshl_add_u32 v8, v14, 3, s56
v_and_b32 v1, 15, v14
v_lshrrev_b32 v2, 4, v14
v_sub_u32 v7, v1, v2
s_lshl_b32 s57, s55, 3
s_sub_u32 s57, 16, s57
v_add_u32 v7, s57, v7                    ; x+16 for a=0
s_add_u32 s57, s54, 2
v_bfe_u32 v9, v7, 2, 2
v_xor_b32 v9, s57, v9
v_lshlrev_b32 v9, 4, v9
v_lshl_add_u32 v{WT}, v7, 6, v9
v_xor_b32 v{WT+1}, 32, v{WT}
v_add_u32 v7, -4, v7
v_bfe_u32 v9, v7, 2, 2
v_xor_b32 v9, s57, v9
v_lshlrev_b32 v9, 4, v9
v_lshl_add_u32 v{WT+2}, v7, 6, v9
v_xor_b32 v{WT+3}, 32, v{WT+2}
s_lshl_b32 s57, s36, 11
v_lshl_add_u32 v7, v14, 4, s57           ; v7 = w*2048 + 16*l
s_add_u32 s57, s57, {U_B}
s_mov_b32 m0, s57
s_mov_b32 s58, s42
s_mov_b32 s59, 0
s_waitcnt lgkmcnt(0)
s_barrier
""")
def afrag(kp, j): return AF + 32 * kp + 4 * j
def aread(kp):
    for j in range(8):
        off = E_B0 - 96 + 2048 * j + 512 * (kp >> 1) + 64 * (kp & 1)
        a(f"ds_read_b64 {vr(afrag(kp, j), 2)}, v8 offset:{off}")
        a(f"ds_read_b64 {vr(afrag(kp, j) + 2, 2)}, v8 offset:{off + 32}")
aread(0)
a(f"""
s_waitcnt vmcnt(0)
v_cmp_ne_u32 vcc, s52, v6
s_cbranch_vccnz L_A_poll1
L_A_go1:
buffer_load_dwordx4 v7, s[28:31], s58 offen sc1 lds
buffer_load_dwordx4 v7, s[28:31], s58 offen offset:1024 sc1 lds
""")
stamp()
aread(1); aread(2); aread(3)
a("""
s_waitcnt vmcnt(0)
s_barrier
""")
stamp()
NB = 7
BR = [16, 20, 24, 28, 32, 36, 40]
seq = [(kp, m) for kp in range(4) for m in range(8)]
def bread(i):
    kp, m = seq[i]
    a(f"ds_read_b128 {vr(BR[i % NB], 4)}, v{WT + kp} offset:{U_B - 1024 + 1024 * m}")
PF = 5
for i in range(PF): bread(i)
a(f"""
global_load_dwordx4 {vr(Q,4)}, v3, s[4:5]
global_load_dwordx4 {vr(Q+4,4)}, v3, s[4:5] offset:1024
v_and_b32 v7, 0x3ff, v3
v_lshlrev_b32 v3, 1, v3
v_sub_u32 v3, v3, v7
s_mov_b64 exec, 1
global_load_dword v15, v3, s[20:21]
s_mov_b64 exec, -1
""")
for i, (kp, m) in enumerate(seq):
    a(f"s_waitcnt lgkmcnt({min(PF - 1, len(seq) - 1 - i)})")
    for j in range(8 - m):
        c = m + j
        srcc = "0" if i == 0 else vr(ACC + 4 * c, 4)
        a(f"v_mfma_f32_16x16x32_bf16 {vr(ACC + 4 * c, 4)}, {vr(afrag(kp, j), 4)}, {vr(BR[i % NB], 4)}, {srcc}")
        if j == 0 and i + PF < len(seq): bread(i + PF)
stamp()
Y = 16; RD = 32
a(f"""
s_lshl_b32 s57, s36, 12
v_lshl_add_u32 v9, v14, 4, s57
v_xor_b32 v11, 0x1000, v9
; y store address: 256*r + 128*ch + 32*(n&3) + 16*(row>>1), r = 4*chunk + (n>>2), chunk = 4hf + 2z + (row&1)
v_and_b32 v4, 3, v1
v_lshlrev_b32 v4, 5, v4
v_lshrrev_b32 v5, 2, v1
v_lshl_add_u32 v4, v5, 8, v4
v_and_b32 v5, 1, v2
v_lshl_add_u32 v4, v5, 10, v4
v_lshrrev_b32 v5, 1, v2
v_lshl_add_u32 v4, v5, 4, v4
s_lshl_b32 s57, s36, 2
s_add_u32 s57, s57, {S_B}
v_mov_b32 v7, s57
v_xor_b32 v8, 4, v7
s_cmp_eq_u32 s55, 0
s_cbranch_scc0 L_A_red1
""")
def red(send, keep):
    for z in range(4): a(f"ds_write_b128 v9, {vr(ACC + 4 * (send + z), 4)} offset:{R_B + 1024 * z}")
    a(f"ds_write_b32 v7, v7\nL_A_rs{send}:\nds_read_b32 v6, v8")
    for z in range(4): a(f"ds_read_b128 {vr(RD + 4 * z, 4)}, v11 offset:{R_B + 1024 * z}")
    a(f"s_waitcnt lgkmcnt(4)\nv_cmp_eq_u32 vcc, 0, v6\ns_cbranch_vccnz L_A_rs{send}")
    for z in range(4):
        a(f"s_waitcnt lgkmcnt({3 - z})")
        for i in range(4): a(f"v_add_f32 v{RD + 4 * z + i}, v{RD + 4 * z + i}, v{ACC + 4 * (keep + z) + i}")
red(4, 0)
a("s_branch L_A_red2\nL_A_red1:")
red(0, 4)
a("L_A_red2:")
for z in range(4):
    a(f"v_cvt_pk_bf16_f32 v{Y + 2 * z}, v{RD + 4 * z}, v{RD + 4 * z + 1}")
    a(f"v_cvt_pk_bf16_f32 v{Y + 2 * z + 1}, v{RD + 4 * z + 2}, v{RD + 4 * z + 3}")
a(f"""
s_lshl_b32 s56, s55, 12
s_lshl_b32 s57, s54, 7
s_add_u32 s56, s56, s57
s_add_u32 s56, s56, s42
v_permlane16_swap_b32 v{Y}, v{Y+2}
v_permlane16_swap_b32 v{Y+1}, v{Y+3}
v_permlane16_swap_b32 v{Y+4}, v{Y+6}
v_permlane16_swap_b32 v{Y+5}, v{Y+7}
s_cmp_lg_u32 s59, 0
s_cbranch_scc1 L_A_slow2
buffer_store_dwordx4 {vr(Y,4)}, v4, s[28:31], s56 offen
buffer_store_dwordx4 {vr(Y+4,4)}, v4, s[28:31], s56 offen offset:2048
L_A_st2:
""")
stamp()
QF, ZQ, DF = AF, AF + 16, AF + 32
a(f"""
s_lshl_b32 s56, s55, 8
s_lshl_b32 s57, s35, 3
s_add_u32 s56, s56, s57
s_lshl_b32 s57, s54, 2
s_add_u32 s56, s56, s57
v_mov_b32 v4, s56
s_lshr_b32 s56, s35, 4
s_lshl_b32 s56, s56, 8
s_lshl_b32 s57, s36, 6
s_add_u32 s56, s56, s57
v_lshl_add_u32 v5, v1, 2, s56
s_add_u32 s46, s46, {F_2}
s_mul_i32 s57, s36, 2080
s_add_u32 s57, s57, {T_B}
s_mov_b32 m0, s57
s_waitcnt vmcnt(2)
""")
for e in range(8):
    src = DD + e // 2
    a(f"v_and_b32 v{DF + e}, 0xffff0000, v{src}" if e & 1 else f"v_lshlrev_b32 v{DF + e}, 16, v{src}")
for row in range(2):
    for e in range(8):
        src = Q + 4 * row + e // 2
        a(f"v_and_b32 v{QF + 8 * row + e}, 0xffff0000, v{src}" if e & 1 else f"v_lshlrev_b32 v{QF + 8 * row + e}, 16, v{src}")
for e in range(8):
    a(f"v_and_b32 v{ZQ + e}, 0xffff0000, v{KV + e}")
    a(f"v_lshlrev_b32 v{ZQ + 8 + e}, 16, v{KV + e}")
a(f"""
s_waitcnt vmcnt(0)
s_mov_b64 exec, 1
s_cmp_lg_u32 s59, 0
s_cbranch_scc1 L_A_slowf2
buffer_store_dword v13, v4, s[28:31], s46 offen
L_A_f2:
s_mov_b64 exec, -1
buffer_load_dword v6, v5, s[28:31], s46 offen sc1
""")
stamp()
for i in range(16):
    a(f"v_mul_f32 v{ZQ + i}, v{ZQ + i}, v{DF + (i & 7)}")
for i in range(16):
    a(f"v_mul_f32 v{ZQ + i}, v{ZQ + i}, v{QF + i}")
a(f"""
s_waitcnt vmcnt(0)
v_cmp_ne_u32 vcc, v13, v6
s_cbranch_vccnz L_A_poll2
L_A_go2:
buffer_load_dwordx4 v12, s[28:31], s48 offen sc1 lds
s_add_u32 s57, s57, 1040
s_mov_b32 m0, s57
v_mov_b32 v8, {S_B}
buffer_load_dwordx4 v12, s[28:31], s49 offen sc1 lds
""")
stamp()
YD, YF, O = 16, 24, 40
a(f"""
s_waitcnt vmcnt(0)
ds_write_b32 v7, v7 offset:16
L_A_ys:
ds_read_b128 {vr(O,4)}, v8 offset:16
""")
for e in range(0, 8, 2):
    a(f"ds_read2_b32 {vr(YD + e, 2)}, v10 offset0:{32 * e} offset1:{32 * e + 32}")
a(f"""
s_waitcnt lgkmcnt(4)
v_min3_u32 v{O}, v{O}, v{O+1}, v{O+2}
v_min_u32 v{O}, v{O}, v{O+3}
v_cmp_eq_u32 vcc, 0, v{O}
s_cbranch_vccnz L_A_ys
""")
stamp()
for e in range(0, 8, 2):
    a(f"s_waitcnt lgkmcnt({3 - e // 2})")
    for ee in (e, e + 1):
        a(f"v_lshlrev_b32 v{YF + ee}, 16, v{YD + ee}")
        a(f"v_and_b32 v{YF + 8 + ee}, 0xffff0000, v{YD + ee}")
        a(f"v_fmac_f32 v{ZQ + ee}, v{QF + ee}, v{YF + ee}")
        a(f"v_fmac_f32 v{ZQ + 8 + ee}, v{QF + 8 + ee}, v{YF + 8 + ee}")
    a(f"v_cvt_pk_bf16_f32 v{O + e // 2}, v{ZQ + e}, v{ZQ + e + 1}")
    a(f"v_cvt_pk_bf16_f32 v{O + 4 + e // 2}, v{ZQ + 8 + e}, v{ZQ + 8 + e + 1}")
a(f"""
global_store_dwordx4 v3, {vr(O,4)}, s[20:21]{OUTF}
global_store_dwordx4 v3, {vr(O+4,4)}, s[20:21] offset:2048{OUTF}
L_A_end:
""")
if STAMPS:
    stamp(); a("s_waitcnt vmcnt(0)"); stamp(); stamps_out()
probe_end()
a("s_endpgm")

a(f"""
L_A_poll1:
s_mov_b32 s60, 0
L_A_poll1a:
buffer_load_dword v6, v5, s[28:31], s46 offen sc1
s_add_u32 s60, s60, 1
s_waitcnt vmcnt(0)
v_cmp_ne_u32 vcc, s52, v6
s_cbranch_vccz L_A_go1
s_and_b32 s61, s60, 15
s_cbranch_scc1 L_A_poll1a
s_add_u32 s61, s38, {WS_F + F_HELLO}
v_mov_b32 v9, s53
s_mov_b64 exec, 1
buffer_store_dword v13, v9, s[28:31], s61 offen sc1
s_mov_b64 exec, -1
v_and_b32 v9, 31, v14
v_lshlrev_b32 v9, 2, v9
buffer_load_dword v6, v9, s[28:31], s61 offen sc1
s_waitcnt vmcnt(0)
v_cmp_ne_u32 vcc, s52, v6
v_subrev_u32 v6, s41, v6
v_cmp_gt_u32 s[32:33], 16, v6
s_and_b64 vcc, vcc, s[32:33]
s_cbranch_vccnz L_A_slow1
s_cmp_lt_u32 s60, {SPIN_MAX}
s_cbranch_scc1 L_A_poll1a
s_branch L_A_go1
L_A_slow1:
s_mov_b32 s59, 1
{"s_sleep 127" + chr(10) + "s_sleep 127" + chr(10) + "s_sleep 127" + chr(10) + "s_sleep 127" + chr(10) + "s_sleep 127" if SLOWPAD else ""}
s_add_u32 s48, s48, {WS_U2}
s_add_u32 s49, s49, {WS_U2}
buffer_store_dwordx4 {vr(UB0,4)}, v12, s[28:31], s48 offen sc1
buffer_store_dwordx4 {vr(UB0+4,4)}, v12, s[28:31], s49 offen sc1
s_add_u32 s48, s48, {WS_Y2 - WS_U2}
s_add_u32 s49, s49, {WS_Y2 - WS_U2}
s_add_u32 s58, s42, {WS_U2}
s_add_u32 s42, s42, {WS_Y2}
s_add_u32 s46, s46, {F_SLOW}
v_mov_b32 v13, s41
s_waitcnt vmcnt(0)
s_mov_b64 exec, 1
buffer_store_dword v13, v4, s[28:31], s46 offen sc1
s_mov_b64 exec, -1
s_mov_b32 s60, 0
L_A_poll1s:
buffer_load_dword v6, v5, s[28:31], s46 offen sc1
s_add_u32 s60, s60, 1
s_waitcnt vmcnt(0)
v_cmp_ne_u32 vcc, s41, v6
s_cbranch_vccz L_A_go1
s_cmp_lt_u32 s60, {SPIN_MAX}
s_cbranch_scc1 L_A_poll1s
s_branch L_A_go1
L_A_slow2:
buffer_store_dwordx4 {vr(Y,4)}, v4, s[28:31], s56 offen sc1
buffer_store_dwordx4 {vr(Y+4,4)}, v4, s[28:31], s56 offen offset:2048 sc1
s_branch L_A_st2
L_A_slowf2:
buffer_store_dword v13, v4, s[28:31], s46 offen sc1
s_branch L_A_f2
L_A_poll2:
s_mov_b32 s60, 0
L_A_poll2a:
buffer_load_dword v6, v5, s[28:31], s46 offen sc1
s_add_u32 s60, s60, 1
s_waitcnt vmcnt(0)
v_cmp_ne_u32 vcc, v13, v6
s_cbranch_vccz L_A_go2
s_cmp_lt_u32 s60, {SPIN_MAX}
s_cbranch_scc1 L_A_poll2a
s_branch L_A_go2
""")

nstamp[0] = 1; role[0] = "B"
F1, XF, G0, GP = 16, 48, 80, 96
a(f"""
L_B:
s_sub_u32 s36, s36, 4
v_and_b32 v0, 255, v0
s_and_b32 s37, s35, 1
s_lshl_b32 s38, s34, 1
s_add_u32 s37, s37, s38                  ; db
s_lshr_b32 s38, s35, 1                   ; s2
s_lshl_b32 s39, s38, 10
s_lshl_b32 s42, s37, 6
s_add_u32 s39, s39, s42
s_lshl_b32 s42, s36, 19
s_add_u32 s39, s39, s42
v_lshrrev_b32 v1, 2, v14
v_and_b32 v2, 3, v14
v_lshlrev_b32 v3, 14, v1
v_lshl_add_u32 v3, v2, 4, v3
v_add_u32 v3, s39, v3
v_add_u32 v4, 0x40000, v3
s_lshl_b32 s42, s36, 11
s_add_u32 s42, s42, {X_B}
s_mov_b32 m0, s42
s_add_u32 s42, s42, 1024
s_lshl_b32 s43, s34, 9
s_lshl_b32 s44, s36, 7
s_add_u32 s43, s43, s44
v_lshl_add_u32 v5, v14, 4, s43
s_lshr_b32 s43, s43, 2
v_lshl_add_u32 v6, v14, 4, s43
s_lshr_b32 s45, s44, 2
s_add_u32 s44, s44, {W_B}
s_add_u32 s45, s45, {W_B + 512}
s_waitcnt lgkmcnt(0)
{"s_add_u32 s22, s22, %d" % WSOFF + chr(10) + "s_addc_u32 s23, s23, 0" if WSOFF else ""}
global_load_lds_dwordx4 v3, s[16:17]
s_mov_b32 m0, s42
s_load_dword s41, s[22:23], s40
global_load_lds_dwordx4 v4, s[16:17]
s_mov_b32 m0, s44
s_mov_b64 exec, 0xff
global_load_lds_dwordx4 v5, s[10:11]
s_mov_b32 m0, s45
s_mov_b64 exec, 3
global_load_lds_dwordx4 v6, s[14:15]
s_mov_b64 exec, -1
s_barrier
s_mov_b32 s28, s22
s_mov_b32 s29, s23
s_mov_b32 s24, s20
s_mov_b32 s25, s21
s_mov_b32 s26, 0x400000
; G store address: slot*32768 + (db*16+s2)*128 + 4*(l&31), slot = 16w + 4j + 2h + rb
v_and_b32 v5, 31, v14
v_lshrrev_b32 v6, 5, v14
v_lshlrev_b32 v7, 16, v6
v_lshl_add_u32 v7, v5, 2, v7
s_lshl_b32 s43, s37, 4
s_add_u32 s43, s43, s38
s_lshl_b32 s44, s43, 7
s_lshl_b32 s45, s36, 19
s_add_u32 s44, s44, s45
s_add_u32 s44, s44, {WS_G}
s_lshl_b32 s45, s36, 5
v_add_u32 v8, s45, v5
v_lshrrev_b32 v9, 1, v8                  ; frequency
v_and_b32 v10, 1, v8
v_cmp_eq_u32 vcc, 1, v8
v_cvt_f32_u32 v11, v10
v_mul_f32 v11, 0x3e800000, v11           ; phase
v_and_b32 v12, 1, v9
v_cndmask_b32 v9, v9, 64, vcc
v_cndmask_b32 v11, v11, 0, vcc
v_mul_u32_u24 v12, 0x8000, v12
v_lshl_or_b32 v12, v12, 16, v12
v_cvt_f32_u32 v9, v9
v_mul_f32 v9, 0x3c000000, v9
v_cvt_f32_u32 v6, v6
v_mul_f32 v6, 4.0, v6
v_fmac_f32 v11, v9, v6
""")
stamp()
TMP = XF
for kap in range(4):
    for eps in range(8):
        c = 16 * kap + 8 * (eps >> 2) + (eps & 3)
        a(f"v_fmamk_f32 v{TMP + eps}, v9, {f2u(c)}, v11")
    for eps in range(8): a(f"v_cos_f32 v{TMP + eps}, v{TMP + eps}")
    for i in range(4): a(f"v_cvt_pk_bf16_f32 v{F1 + 4 * kap + i}, v{TMP + 2 * i}, v{TMP + 2 * i + 1}")
    for i in range(4): a(f"v_xor_b32 v{F1 + 16 + 4 * kap + i}, v12, v{F1 + 4 * kap + i}")
a(f"""
v_lshrrev_b32 v5, 5, v14
v_lshlrev_b32 v5, 8, v5
v_and_b32 v6, 3, v1
v_lshl_add_u32 v5, v6, 6, v5
v_bfe_u32 v6, v14, 4, 1
v_lshl_add_u32 v5, v6, 5, v5
v_lshl_add_u32 v5, v2, 3, v5
v_add_u32 v5, {X_B}, v5
""")
stamp()
a(f"""
s_waitcnt vmcnt(0) lgkmcnt(0)
s_barrier
""")
stamp()
for i in range(16): a(f"ds_read_b64_tr_b16 {vr(XF + 2 * i, 2)}, v5 offset:{512 * i}")
a(f"s_add_u32 s41, s41, {NONCE_INC}")
for kap in range(8):
    a(f"s_waitcnt lgkmcnt({14 - 2 * kap})")
    a(f"v_mfma_f32_32x32x16_bf16 {vr(G0,16)}, {vr(F1 + 4 * kap, 4)}, {vr(XF + 4 * kap, 4)}, {'0' if kap == 0 else vr(G0,16)}")
a(f"""
s_lshl_b32 s46, s34, 3
s_lshr_b32 s47, s35, 2
s_add_u32 s46, s46, s47                  ; slot
s_and_b32 s47, s35, 1
s_bfe_u32 s48, s35, 0x10001              ; class
s_sub_u32 s49, 128, s46
s_cmp_eq_u32 s46, 0
s_cselect_b32 s49, 64, s49
s_cmp_eq_u32 s48, 0
s_cselect_b32 s49, s46, s49
s_lshl_b32 s47, s47, 10
s_add_u32 s49, s49, s47
v_mov_b32 v13, s41
""")
for j in range(4):
    for rb in range(2):
        a(f"v_cvt_pk_bf16_f32 v{GP + 2 * j + rb}, v{G0 + 4 * j + 2 * rb}, v{G0 + 4 * j + 2 * rb + 1}")
        a(f"buffer_store_dword v{GP + 2 * j + rb}, v7, s[28:31], s44 offen sc1")
        a(f"s_add_u32 s44, s44, {32768 if rb == 0 else 3 * 32768}")
stamp()
FA, FB, FC, TW = 16, 20, 28, 44
TMP = 64
a(f"""
v_and_b32 v1, 15, v14                    ; n / m
v_lshrrev_b32 v2, 4, v14                 ; kg
v_cvt_f32_u32 v3, v2
v_mul_f32 v3, 4.0, v3                    ; 4kg
v_cvt_f32_u32 v4, v1
; stage a: amp[pi] * cos(t*s2/2048 + po/4 + psi[pi])
v_lshrrev_b32 v5, 1, v1
v_lshl_add_u32 v5, v5, 7, s49
v_cvt_f32_u32 v5, v5
v_mul_f32 v5, 0x3a000000, v5             ; t/2048
v_and_b32 v6, 1, v1
v_cvt_f32_u32 v6, v6
v_mul_f32 v6, 0x3e800000, v6
v_fmac_f32 v6, v5, v3
s_cmp_eq_u32 s48, 0
s_cselect_b32 s50, 0xbe800000, 0x3e800000
s_cselect_b32 s51, 0x0000ffff, 0xffff0000
s_cmp_eq_u32 s46, 0
s_cselect_b32 s50, 0, s50
s_cselect_b32 s51, s51, -1
""".replace("s_cselect_b32 s50, 0xbe800000, 0x3e800000", "s_mov_b32 s50, 0x3e800000\ns_cselect_b32 s50, 0xbe800000, s50")
   .replace("s_cselect_b32 s51, 0x0000ffff, 0xffff0000", "s_mov_b32 s51, 0xffff0000\ns_cselect_b32 s51, 0x0000ffff, s51"))
for i in range(4):
    a(f"v_fmamk_f32 v{TMP + 2 * i}, v5, {f2u(i)}, v6")
    a(f"v_add_f32 v{TMP + 2 * i + 1}, s50, v{TMP + 2 * i}")
for i in range(8): a(f"v_cos_f32 v{TMP + i}, v{TMP + i}")
for i in range(4):
    a(f"v_cvt_pk_bf16_f32 v{FA + i}, v{TMP + 2 * i}, v{TMP + 2 * i + 1}")
for i in range(4): a(f"v_and_b32 v{FA + i}, s51, v{FA + i}")
a("v_mul_f32 v5, 0x3d800000, v4\nv_mul_f32 v6, v5, v3")
for i in range(4): a(f"v_fmamk_f32 v{TMP + i}, v5, {f2u(i)}, v6")
for i in range(4):
    a(f"v_sin_f32 v{TMP + 4 + i}, v{TMP + i}")
    a(f"v_cos_f32 v{TMP + i}, v{TMP + i}")
for i in range(4):
    a(f"v_cvt_pk_bf16_f32 v{FB + i}, v{TMP + i}, v{TMP + 4 + i}")
    a(f"v_cvt_pk_bf16_f32 v{FB + 4 + i}, -v{TMP + 4 + i}, v{TMP + i}")
a(f"""
s_lshl_b32 s50, s36, 10
s_lshl_b32 s51, s43, 2
s_add_u32 s50, s50, s51
v_mov_b32 v8, s50
s_lshr_b32 s50, s46, 4
s_lshl_b32 s50, s50, 10
s_lshl_b32 s51, s36, 8
s_add_u32 s50, s50, s51
v_lshl_add_u32 v9, v14, 2, s50
s_mov_b32 s52, {WS_F + F_B}
""")
a("v_mul_f32 v5, 0x3b000000, v4\nv_mul_f32 v6, v5, v3")
for mt in range(2):
    for r in range(4): a(f"v_fmamk_f32 v{TW + 4 * mt + r}, v5, {f2u(16 * mt + r)}, v6")
for i in range(8):
    a(f"v_sin_f32 v{TW + 8 + i}, v{TW + i}")
    a(f"v_cos_f32 v{TW + i}, v{TW + i}")
stamp()
a(f"""
s_barrier
s_barrier
s_barrier
s_waitcnt vmcnt(0)
s_mov_b64 exec, 1
buffer_store_dword v13, v8, s[28:31], s52 offen sc1
s_mov_b64 exec, -1
buffer_load_dword v10, v9, s[28:31], s52 offen sc1
""")
stamp()
for nt in range(2):
    a(f"v_fmaak_f32 v5, v4, v{TMP + 8}, {f2u(0.5 * nt)}".replace(f"v{TMP + 8}", "v11") if False else
      (f"v_mul_f32 v5, 0x3d000000, v4" if nt == 0 else "v_add_f32 v5, 0.5, v5"))
    a("v_mul_f32 v6, v5, v3")
    for mt in range(2):
        for r in range(4): a(f"v_fmamk_f32 v{TMP + r}, v5, {f2u(16 * mt + r)}, v6")
        for r in range(4):
            a(f"v_sin_f32 v{TMP + 4 + r}, v{TMP + r}")
            a(f"v_cos_f32 v{TMP + r}, v{TMP + r}")
        for r in range(4): a(f"v_cvt_pk_bf16_f32 v{FC + 8 * nt + 4 * mt + r}, v{TMP + r}, v{TMP + 4 + r}")
GL, VA = 64, 96
a(f"""
v_and_b32 v3, 7, v1
v_lshrrev_b32 v4, 3, v1
v_lshlrev_b32 v5, 4, v3
v_lshl_add_u32 v5, v2, 9, v5
v_lshl_add_u32 v5, v4, 12, v5
s_lshl_b32 s50, s46, 15
s_lshl_b32 s51, s36, 13
s_add_u32 s50, s50, s51
s_add_u32 s50, s50, {WS_G}
v_xor_b32 v6, s36, v3
v_lshlrev_b32 v6, 4, v6
v_lshl_add_u32 v6, v3, 8, v6
v_lshl_add_u32 v6, v4, 3, v6
v_lshl_add_u32 v6, v2, 12, v6
v_add_u32 v6, {V_B}, v6
v_xor_b32 v7, 64, v6
v_lshrrev_b32 v3, 2, v1
v_xor_b32 v3, v3, v2
v_lshlrev_b32 v3, 4, v3
v_lshl_add_u32 v3, v1, 6, v3
s_lshl_b32 s51, s36, 12
s_add_u32 s51, s51, {V_B}
v_add_u32 v3, s51, v3
v_xor_b32 v4, 64, v3
s_lshl_b32 s51, s36, 2
s_add_u32 s51, s51, {S_B}
v_mov_b32 v8, s51
v_and_b32 v11, 1, v2
v_lshlrev_b32 v11, 9, v11
v_lshl_add_u32 v11, v1, 5, v11
v_lshrrev_b32 v12, 1, v2
v_lshl_add_u32 v11, v12, 4, v11
s_lshl_b32 s53, s36, 8
s_add_u32 s53, s53, s49
s_lshl_b32 s53, s53, 11
s_add_u32 s54, s53, 0x40000
s_waitcnt vmcnt(0) lgkmcnt(0)
v_cmp_ne_u32 vcc, s41, v10
s_cbranch_vccnz L_B_poll
L_B_go:
""")
for g in range(2):
    for i in range(4):
        a(f"buffer_load_dwordx4 {vr(GL + 16 * g + 4 * i, 4)}, v5, s[28:31], s50 offen offset:{2048 * g + 128 * i} sc1")
stamp()
for g in range(2):
    a(f"s_waitcnt vmcnt({4 - 4 * g})")
    b = GL + 16 * g
    for i in range(4):
        for e in range(i + 1, 4): a(f"v_swap_b32 v{b + 4 * i + e}, v{b + 4 * e + i}")
    for e in range(4):
        a(f"v_mfma_f32_16x16x32_bf16 {vr(VA + 16 * g + 4 * e, 4)}, {vr(FA,4)}, {vr(b + 4 * e, 4)}, 0")
stamp()
VP = 64
for e in range(4):
    for rb in range(2):
        for g in range(2):
            s = VA + 16 * g + 4 * e + 2 * rb
            a(f"v_cvt_pk_bf16_f32 v{VP + 4 * e + 2 * rb + g}, v{s}, v{s + 1}")
        a(f"ds_write_b64 v{7 if e & 1 else 6}, {vr(VP + 4 * e + 2 * rb, 2)} offset:{2048 * rb + 128 * (e >> 1)}")
VR, W = 80, 96
a(f"""
ds_write_b32 v8, v8 offset:32
v_mov_b32 v8, {S_B}
L_B_vs:
ds_read_b128 {vr(60,4)}, v8 offset:32
""")
for z in range(2):
    for mt in range(2):
        a(f"ds_read_b128 {vr(VR + 8 * z + 4 * mt, 4)}, v{4 if mt else 3} offset:{2048 * z + 1024 * mt}")
a(f"""
s_waitcnt lgkmcnt(4)
v_min3_u32 v60, v60, v61, v62
v_min_u32 v60, v60, v63
v_cmp_eq_u32 vcc, 0, v60
s_cbranch_vccnz L_B_vs
""")
stamp()
for z in range(2):
    for mt in range(2):
        a(f"s_waitcnt lgkmcnt({3 - 2 * z - mt})")
        for po in range(2):
            a(f"v_mfma_f32_16x16x32_bf16 {vr(W + 16 * z + 8 * mt + 4 * po, 4)}, {vr(VR + 8 * z + 4 * mt, 4)}, {vr(FB + 4 * po, 4)}, 0")
U, UT, YA, YP = 64, 160, 128, 144
for z in range(2):
    for mt in range(2):
        wr = W + 16 * z + 8 * mt; wi = wr + 4; c = TW + 4 * mt; s = TW + 8 + 4 * mt
        for r in range(4): a(f"v_mul_f32 v{UT + r}, v{c + r}, v{wr + r}")
        for r in range(4): a(f"v_mul_f32 v{UT + 4 + r}, v{c + r}, v{wi + r}")
        for r in range(4): a(f"v_fmac_f32 v{UT + r}, v{s + r}, v{wi + r}")
        for r in range(4): a(f"v_fma_f32 v{UT + 4 + r}, -v{s + r}, v{wr + r}, v{UT + 4 + r}")
        for r in range(4): a(f"v_cvt_pk_bf16_f32 v{U + 8 * z + 4 * mt + r}, v{UT + r}, v{UT + 4 + r}")
        for nt in range(2):
            d = vr(YA + 8 * z + 4 * nt, 4)
            a(f"v_mfma_f32_16x16x32_bf16 {d}, {vr(U + 8 * z + 4 * mt, 4)}, {vr(FC + 8 * nt + 4 * mt, 4)}, {'0' if mt == 0 else d}")
for z in range(2):
    for nt in range(2):
        for j in range(2):
            s = YA + 8 * z + 4 * nt + 2 * j
            a(f"v_cvt_pk_bf16_f32 v{YP + 4 * z + 2 * nt + j}, v{s}, v{s + 1}")
    a(f"v_permlane16_swap_b32 v{YP + 4 * z}, v{YP + 4 * z + 2}")
    a(f"v_permlane16_swap_b32 v{YP + 4 * z + 1}, v{YP + 4 * z + 3}")
    a(f"buffer_store_dwordx4 {vr(YP + 4 * z, 4)}, v11, s[24:27], s{53 + z} offen offset:1024{OUTF}")
a(f"""
s_or_b32 s56, s2, s36
s_cbranch_scc1 L_B_end
v_mov_b32 v5, s40
s_mov_b64 exec, 1
buffer_store_dword v13, v5, s[28:31], 0 offen
s_mov_b64 exec, -1
L_B_end:
""")
if STAMPS:
    stamp(); a("s_waitcnt vmcnt(0)"); stamp(); stamps_out()
probe_end()
a(f"""
L_end:
s_endpgm
L_B_poll:
s_mov_b32 s60, 0
L_B_polla:
buffer_load_dword v10, v9, s[28:31], s52 offen sc1
s_add_u32 s60, s60, 1
s_waitcnt vmcnt(0)
v_cmp_ne_u32 vcc, s41, v10
s_cbranch_vccz L_B_go
s_cmp_lt_u32 s60, {SPIN_MAX}
s_cbranch_scc1 L_B_polla
s_branch L_B_go
""")

body = a.finish()
ref = open(f"cdna_kernels/{NAME}.s.ref").read().split("\n")
hdr = [l for l in ref if l.startswith(";") and "@launch" not in l]
out = "\n".join(hdr) + f"""
; @launch grid=(256,1,1) block=(512,1,1) lds={LDS_BYTES}
.amdgcn_target "amdgcn-amd-amdhsa--gfx950"
.text
.globl {NAME}_kernel
.p2align 8
.type {NAME}_kernel,@function
""" + body + f""".p2align 8
.fill 1024, 4, 0xbf810000
.section .rodata,"a"
.p2align 6
.amdhsa_kernel {NAME}_kernel
  .amdhsa_next_free_vgpr 256
  .amdhsa_next_free_sgpr 102
  .amdhsa_accum_offset 256
  .amdhsa_group_segment_fixed_size 0
  .amdhsa_kernarg_size 112
  .amdhsa_user_sgpr_count 2
  .amdhsa_user_sgpr_kernarg_segment_ptr 1
  .amdhsa_system_sgpr_workgroup_id_x 1
.end_amdhsa_kernel
"""
dst = [x for x in sys.argv[1:] if not x.startswith("--")]
open(dst[0] if dst else f"cdna_kernels/{NAME}.s", "w").write(out)
print("nops inserted:", a.nops, file=sys.stderr)
```
